```python
import torch

def _softmax(x, axis=-1):
    return torch.softmax(x, dim=axis)
def _gelu(x):
    return torch.nn.functional.gelu(x, approximate="tanh")
def _silu(x):
    return torch.nn.functional.silu(x)
def _sigmoid(x):
    return torch.sigmoid(x)
def _layernorm(x, axis=-1, eps=1e-5):
    m = x.mean(dim=axis, keepdim=True)
    v = x.var(dim=axis, keepdim=True, unbiased=False)
    return (x - m) / torch.sqrt(v + eps)
def _scatter_add(tgt, idx, src, axis=0):
    return tgt.clone().index_add_(axis, idx, src)
def _segment_sum(src, seg, n):
    out = torch.zeros((n,) + src.shape[1:], dtype=src.dtype)
    return out.index_add_(0, seg, src)
def _pad(x, pw):
    flat = tuple(v for pair in reversed(pw) for v in pair)
    return torch.nn.functional.pad(x, flat)

kernel_name = 'concat_heads__mha_block_cached__gqa_block_cached__near_ridge'

def setup_inputs():

    _w = (lambda a: (lambda t: t.to(torch.bfloat16) if t.is_floating_point() else t)(torch.as_tensor(a)))
    def _A_setup():
        B, Sq, D = 8, 224, 512
        H, Sk, Dh = 32, 512, 128
        return {
            "x": _w((lambda *s: torch.randn(*s, dtype=torch.bfloat16) * 0.8)(B, Sq, D)),
            "k_cache": _w((lambda *s: torch.randn(*s, dtype=torch.bfloat16) * 0.8)(B, H, Sk, Dh)),
            "v_cache": _w((lambda *s: torch.randn(*s, dtype=torch.bfloat16) * 0.05)(B, H, Sk, Dh)),
            "wq": _w((lambda *s: torch.randn(*s, dtype=torch.bfloat16) * 0.8)(D, H * Dh) * (D ** -0.5)),
            "wo": _w((lambda *s: torch.randn(*s, dtype=torch.bfloat16) * 0.05)(H * Dh, D) * ((H * Dh) ** -0.5)),
        }
    _A_in = _A_setup()

    def _B_setup():
        B, Sq, D = 8, 224, 512
        Hq, Hkv, Sk, Dh = 32, 32, 512, 128
        assert Hq % Hkv == 0, (Hq, Hkv)
        return {
            "x": _w((lambda *s: torch.randn(*s, dtype=torch.bfloat16) * 0.8)(B, Sq, D)),
            "k_cache": _w((lambda *s: torch.randn(*s, dtype=torch.bfloat16) * 0.8)(B, Hkv, Sk, Dh)),
            "v_cache": _w((lambda *s: torch.randn(*s, dtype=torch.bfloat16) * 0.05)(B, Hkv, Sk, Dh)),
            "wq": _w((lambda *s: torch.randn(*s, dtype=torch.bfloat16) * 0.8)(D, Hq * Dh) * (D ** -0.5)),
            "wo": _w((lambda *s: torch.randn(*s, dtype=torch.bfloat16) * 0.05)(Hq * Dh, D) * ((Hq * Dh) ** -0.5)),
        }
    _B_in = _B_setup()

    return {
        "A_x": _A_in["x"],
        "A_k_cache": _A_in["k_cache"],
        "A_v_cache": _A_in["v_cache"],
        "A_wq": _A_in["wq"],
        "A_wo": _A_in["wo"],
        "B_x": _B_in["x"],
        "B_k_cache": _B_in["k_cache"],
        "B_v_cache": _B_in["v_cache"],
        "B_wq": _B_in["wq"],
        "B_wo": _B_in["wo"],
    }

def reference(A_x, A_k_cache, A_v_cache, A_wq, A_wo, B_x, B_k_cache, B_v_cache, B_wq, B_wo):
    def _A_ref(x, k_cache, v_cache, wq, wo):
        B, Sq, D = x.shape
        H, Dh = 32, 128
        q = (lambda x, *d: x.permute(*d))((x @ wq).reshape(B, Sq, H, Dh), 0, 2, 1, 3)
        scores = torch.einsum("bhqd,bhkd->bhqk", q, k_cache) * (Dh ** -0.5)
        p = _softmax(scores, axis=-1)
        o = torch.einsum("bhqk,bhkd->bhqd", p, v_cache)
        return (lambda x, *d: x.permute(*d))(o, 0, 2, 1, 3).reshape(B, Sq, H * Dh) @ wo

    def _B_ref(x, k_cache, v_cache, wq, wo):
        B, Sq, D = x.shape
        Hq, Dh = 32, 128
        Hkv = k_cache.shape[1]
        rep = Hq // Hkv
        q = (lambda x, *d: x.permute(*d))((x @ wq).reshape(B, Sq, Hq, Dh), 0, 2, 1, 3)
        k = (lambda x, n, axis: torch.repeat_interleave(x, n, dim=axis))(k_cache, rep, axis=1)
        v = (lambda x, n, axis: torch.repeat_interleave(x, n, dim=axis))(v_cache, rep, axis=1)
        scores = torch.einsum("bhqd,bhkd->bhqk", q, k) * (Dh ** -0.5)
        p = _softmax(scores, axis=-1)
        o = torch.einsum("bhqk,bhkd->bhqd", p, v)
        return (lambda x, *d: x.permute(*d))(o, 0, 2, 1, 3).reshape(B, Sq, Hq * Dh) @ wo

    a = _A_ref(A_x, A_k_cache, A_v_cache, A_wq, A_wo)
    b = _B_ref(B_x, B_k_cache, B_v_cache, B_wq, B_wo)
    return torch.concatenate([a, b], axis=-1)
```

```python
import re

def R(prefix, lo, n=1):
    return [f"{prefix}{lo+i}" for i in range(n)]

def rng(prefix, lo, n):
    return f"{prefix}{lo}" if n == 1 else f"{prefix}[{lo}:{lo+n-1}]"

class Reg:
    def __init__(self, p, lo, n=1):
        self.p, self.lo, self.n = p, lo, n
    def __str__(self): return rng(self.p, self.lo, self.n)
    def regs(self): return R(self.p, self.lo, self.n)
    def __getitem__(self, i):
        if isinstance(i, slice):
            a = i.start or 0; b = i.stop if i.stop is not None else self.n
            assert 0 <= a < b <= self.n
            return Reg(self.p, self.lo + a, b - a)
        assert 0 <= i < self.n
        return Reg(self.p, self.lo + i, 1)

def V(lo, n=1): return Reg('v', lo, n)
def A(lo, n=1): return Reg('a', lo, n)
def S(lo, n=1): return Reg('s', lo, n)

def _regs(x):
    out = []
    for y in x:
        if isinstance(y, Reg): out += y.regs()
        elif isinstance(y, str) and re.fullmatch(r"(m0|vcc|scc|exec|[vas]\d+)", y): out.append(y)
    return out

class I:
    def __init__(self, text, kind, rd=(), wr=(), tok_wait=(), tok=None, ldsrd=None, srcc=None, comment=None):
        self.text = text; self.kind = kind
        self.rd = set(_regs(rd)); self.wr = set(_regs(wr))
        self.tok_wait = tuple(tok_wait)
        self.tok = tok
        self.ldsrd = ldsrd
        self.srcc = set(_regs([srcc])) if srcc is not None else set()
        self.comment = comment
        self.lo = 0; self.hi = 10**9; self.after = []
        self.gap = None
        self.pre_wait = None
        self.pre_nop = 0
    def cost(self):
        return 2 if self.kind == 'trans' else 1
    def __repr__(self): return self.text

VM_KINDS = ('vld', 'dma', 'vst')
LGKM_KINDS = ('dsr', 'dsw')
VALU_KINDS = ('valu', 'trans', 'perml', 'rfl')

def mfma(d, a, b, c):
    cs = str(c) if isinstance(c, Reg) else str(c)
    return I(f"v_mfma_f32_16x16x32_bf16 {d}, {a}, {b}, {cs}", 'mfma', rd=[a, b] + ([c] if isinstance(c, Reg) else []), wr=[d],
             srcc=c if isinstance(c, Reg) else None)

def valu(op, d, *src, kind='valu', extra_rd=(), extra_wr=()):
    return I(f"{op} {d}, " + ", ".join(str(s) for s in src), kind, rd=list(src) + list(extra_rd), wr=[d] + list(extra_wr))

def salu(op, d, *src, scc=True, rdscc=False):
    wr = [d] + (['scc'] if scc else [])
    rd = list(src) + (['scc'] if rdscc else [])
    return I(f"{op} {d}, " + ", ".join(str(s) for s in src), 'salu', rd=rd, wr=wr)

def smov(d, s): return salu("s_mov_b32", d, s, scc=False)

def hexs(x): return hex(x) if x > 64 else str(x)

def ds_read128(d, addr, off, ldsrd=None, tok_wait=()):
    assert 0 <= off < 65536, off
    return I(f"ds_read_b128 {d}, {addr} offset:{off}", 'dsr', rd=[addr], wr=[d], ldsrd=ldsrd, tok_wait=tok_wait)

def ds_read_tr(d, addr, off, ldsrd=None, tok_wait=()):
    assert 0 <= off < 65536, off
    return I(f"ds_read_b64_tr_b16 {d}, {addr} offset:{off}", 'dsr', rd=[addr], wr=[d], ldsrd=ldsrd, tok_wait=tok_wait)

def ds_write128(addr, s, off, tok_wait=()):
    assert 0 <= off < 65536, off
    return I(f"ds_write_b128 {addr}, {s} offset:{off}", 'dsw', rd=[addr, s], tok_wait=tok_wait)

def buf_load(d, voff, srd, soff, off=0, flags=""):
    assert 0 <= off < 4096
    n = {1: "dword", 2: "dwordx2", 4: "dwordx4"}[d.n]
    o = f" offset:{off}" if off else ""
    f = (" " + flags) if flags else ""
    return I(f"buffer_load_{n} {d}, {voff}, {srd}, {soff} offen{o}{f}", 'vld', rd=[voff, srd, soff], wr=[d])

def buf_dma(voff, srd, soff, off, tok, flags=""):
    assert 0 <= off < 4096
    o = f" offset:{off}" if off else ""
    f = (" " + flags) if flags else ""
    return I(f"buffer_load_dwordx4 {voff}, {srd}, {soff} offen{o}{f} lds", 'dma', rd=[voff, srd, soff, 'm0'], tok=tok)

def buf_store(s, voff, srd, soff, off=0, flags=""):
    assert 0 <= off < 4096
    n = {1: "dword", 2: "dwordx2", 4: "dwordx4"}[s.n]
    o = f" offset:{off}" if off else ""
    f = (" " + flags) if flags else ""
    return I(f"buffer_store_{n} {s}, {voff}, {srd}, {soff} offen{o}{f}", 'vst', rd=[s, voff, srd, soff])

def barrier(tok_wait=(), lgkm0=True):
    i = I("s_barrier", 'bar', tok_wait=tok_wait)
    i.lgkm0 = lgkm0
    return i

def label(name): return I(f"{name}:", 'label')
def raw(text, kind='salu', rd=(), wr=()): return I(text, kind, rd=rd, wr=wr)
def waitall(): return I("s_waitcnt vmcnt(0) lgkmcnt(0)", 'waitall')

def weave(mf, fillers, vec_cap=2, name=""):
    n = len(mf)
    gaps_s = [[] for _ in range(n)]
    gaps_v = [[] for _ in range(n)]
    pend = list(fillers)
    for k, f in enumerate(pend):
        f.gap = None; f._ord = k
        f.hi = min(f.hi, n - 1)
        assert f.lo <= f.hi, (f.text, f.lo, f.hi)
    over = 0
    for g in range(n):
        cap = vec_cap; scap = 1
        while True:
            el = []
            for f in pend:
                if f.lo > g: continue
                ok = True
                for (o, d) in f.after:
                    if o.gap is None or o.gap + d > g: ok = False; break
                el.append(f) if ok else None
            if not el: break
            el.sort(key=lambda f: (f.hi, f._ord))
            placed = None
            for f in el:
                must = f.hi <= g
                if f.kind == 'salu' and scap > 0 and not any(o.gap == g for (o, d) in f.after):
                    gaps_s[g].append(f); scap -= 1; placed = f; break
                if f.kind == 'salu' and not must:
                    continue
                if f.cost() <= cap or must:
                    if f.cost() > cap: over += f.cost() - max(cap, 0)
                    gaps_v[g].append(f); cap -= f.cost(); placed = f; break
            if placed is None: break
            placed.gap = g
            pend.remove(placed)
    assert not pend, [(f.text, f.lo, f.hi) for f in pend]
    out = []
    for g in range(n):
        out.append(mf[g]); out += gaps_s[g]; out += gaps_v[g]
    if over: print(f"[weave {name}] overflow slots: {over}")
    return out

class Loop:
    def __init__(self, body): self.body = body

def flatten(prog, times=2):
    out = []
    for x in prog:
        if isinstance(x, Loop):
            for _ in range(times): out += x.body
        else: out.append(x)
    return out

def insert_waits(prog):
    allins = flatten(prog, 1)
    for i in allins: i.pre_wait = None
    changed = True
    it = 0
    while changed:
        changed = False; it += 1
        assert it < 20
        seq = flatten(prog, 3)
        vm = []; lg = []
        hoist = None
        vm_since = 0; lg_since = 0
        prev_was_mfma = False
        for ins in seq:
            if prev_was_mfma:
                hoist = ins; vm_since = 0; lg_since = 0
            if ins.kind in ('label', 'branch', 'bar'):
                pass
            if ins.pre_wait is not None:
                a, b = ins.pre_wait
                if a is not None: vm = vm[max(0, len(vm) - a):]
                if b is not None: lg = lg[max(0, len(lg) - b):]
            if ins.kind == 'waitall':
                vm = []; lg = []
            touched = ins.rd | ins.wr
            need_vm = None; need_lg = None
            for k, o in enumerate(vm):
                hit = (o.wr & touched) or (o.tok is not None and o.tok in ins.tok_wait)
                if hit: need_vm = len(vm) - 1 - k
            for k, o in enumerate(lg):
                hit = (o.wr & touched) or (ins.kind == 'dma' and o.ldsrd is not None and o.ldsrd == ins.tok)
                if ins.kind == 'bar' and getattr(ins, 'lgkm0', False): hit = True
                if hit: need_lg = len(lg) - 1 - k
            if need_vm is not None or need_lg is not None:
                tgt = ins; nv, nl = need_vm, need_lg
                if hoist is not None and hoist is not ins:
                    hv = None if nv is None else nv - vm_since
                    hl = None if nl is None else nl - lg_since
                    if (hv is None or hv >= 0) and (hl is None or hl >= 0):
                        tgt = hoist; nv, nl = hv, hl
                old = tgt.pre_wait or (None, None)
                def mn(a, b): return b if a is None else (a if b is None else min(a, b))
                new = (mn(old[0], nv), mn(old[1], nl))
                if new[0] is not None: new = (min(new[0], 63), new[1])
                if new[1] is not None: new = (new[0], min(new[1], 15))
                if new != old:
                    tgt.pre_wait = new; changed = True
                if need_vm is not None: vm = vm[len(vm) - need_vm:] if need_vm else []
                if need_lg is not None: lg = lg[len(lg) - need_lg:] if need_lg else []
            if ins.kind in VM_KINDS:
                vm.append(ins); vm_since += 1
                assert len(vm) <= 63 or True
            if ins.kind in LGKM_KINDS:
                lg.append(ins); lg_since += 1
            if ins.kind in ('label', 'branch', 'bar', 'waitall'):
                hoist = None
            prev_was_mfma = ins.kind == 'mfma'

def insert_nops(prog, verbose=True):
    allins = flatten(prog, 1)
    for i in allins: i.pre_nop = 0
    changed = True
    while changed:
        changed = False
        seq = flatten(prog, 3)
        t = 0
        last_valu_w = {}; last_trans_w = {}; last_mfma_w = {}; last_mfma_c = {}; last_salu_w = {}; last_valu_sw = {}; last_store_rd = {}
        for ins in seq:
            if ins.kind == 'label': continue
            if ins.pre_wait is not None: t += 1
            t += ins.pre_nop
            need = 0
            def req(tp, d):
                nonlocal need
                need = max(need, d - (t - tp - 1))
            k = ins.kind
            if k == 'mfma':
                for r in ins.rd:
                    if r in last_valu_w: req(last_valu_w[r], 2)
                    if r in last_mfma_w:
                        tp, prod = last_mfma_w[r]
                        if r in ins.srcc and not (r in (ins.rd - ins.srcc)):
                            if prod.wr == ins.srcc: pass
                            else: req(tp, 6)
                        else: req(tp, 8)
                for r in ins.wr:
                    if r in last_mfma_w and r not in ins.srcc:
                        tp, prod = last_mfma_w[r]
                        req(tp, 6)
            else:
                if k in VALU_KINDS or k in VM_KINDS or k in LGKM_KINDS:
                    for r in ins.rd | ins.wr:
                        if r in last_mfma_w: req(last_mfma_w[r][0], 8)
                if k in VALU_KINDS:
                    for r in ins.wr:
                        if r in last_mfma_c: req(last_mfma_c[r], 3)
                        if r in last_store_rd: req(last_store_rd[r], 2)
                    if k != 'trans':
                        for r in ins.rd:
                            if r in last_trans_w: req(last_trans_w[r], 1)
                    for r in ins.rd:
                        if r in last_valu_sw: req(last_valu_sw[r], 2)
                    if k == 'perml':
                        for r in ins.rd:
                            if r in last_valu_w: req(last_valu_w[r], 2)
                    if k == 'rfl':
                        for r in ins.rd:
                            if r in last_valu_w: req(last_valu_w[r], 1)
                if k in VM_KINDS or k in LGKM_KINDS:
                    for r in ins.wr:
                        if r in last_mfma_c: req(last_mfma_c[r], 3)
                        if r in last_store_rd: req(last_store_rd[r], 1)
                if k in VM_KINDS:
                    for r in ins.rd:
                        if r in last_valu_sw: req(last_valu_sw[r], 5)
                if k == 'dma' and 'm0' in last_salu_w: req(last_salu_w['m0'], 1)
                if k == 'salu':
                    for r in ins.rd:
                        if r in last_valu_sw: req(last_valu_sw[r], 2)
            if need > 0:
                ins.pre_nop += need; t += need; changed = True
            if k == 'mfma':
                for r in ins.wr: last_mfma_w[r] = (t, ins)
                for r in ins.srcc: last_mfma_c[r] = t
            if k in VALU_KINDS:
                for r in ins.wr:
                    if r[0] in 'va' and r != 'vcc':
                        last_valu_w[r] = t
                        if k == 'trans': last_trans_w[r] = t
                        else: last_trans_w.pop(r, None)
                        last_mfma_w.pop(r, None)
                    else: last_valu_sw[r] = t
            if k == 'salu':
                for r in ins.wr: last_salu_w[r] = t; last_valu_sw.pop(r, None)
            if k == 'vst':
                for r in ins.rd:
                    if r[0] in 'va': last_store_rd[r] = t
            t += 1
    if verbose:
        tot = sum(i.pre_nop for i in allins)
        print(f"[nops] total inserted wait states: {tot}")

def emit(prog):
    lines = []
    for ins in flatten(prog, 1):
        if ins.kind == 'label':
            assert ins.pre_wait is None and ins.pre_nop == 0
            lines.append(ins.text); continue
        if ins.pre_wait is not None:
            a, b = ins.pre_wait
            w = "s_waitcnt"
            if a is not None: w += f" vmcnt({a})"
            if b is not None: w += f" lgkmcnt({b})"
            lines.append("    " + w)
        n = ins.pre_nop
        while n > 0:
            m = min(n, 16); lines.append(f"    s_nop {m-1}"); n -= m
        lines.append("    " + ins.text + (f"    ; {ins.comment}" if ins.comment else ""))
    return lines

def estimate(seq):
    t = 0; last_mf = -100
    for ins in seq:
        if ins.kind == 'label': continue
        if ins.pre_wait is not None: t += 1
        if ins.pre_nop: t += ins.pre_nop
        k = ins.kind
        if k == 'mfma':
            t = max(t, last_mf + 4); last_mf = t; t += 1
        elif k in ('salu', 'bar', 'branch', 'waitall'):
            t += 1
        else:
            t = max(t, last_mf + 2); t += ins.cost()
    return t * 4
```

```python
import sys, struct
from asmlib import *

NAME = "concat_heads__mha_block_cached__gqa_block_cached__near_ridge"

KG = 1040
VG = 1056
KSLOT = 8 * KG
VSLOT = 8 * VG
KREG = 4 * KSLOT
VREG = 4 * VSLOT
VBASE = 2 * KREG
XBLK = 4 * KG
XCB = 7 * XBLK
LDS_TOTAL = 163840
XBASE = LDS_TOTAL - 4 * XCB

SRD_X, SRD_WQ, SRD_K, SRD_V, SRD_WO, SRD_P = S(8, 4), S(12, 4), S(16, 4), S(20, 4), S(24, 4), S(28, 4)
sW, sHG, sB, sBLK, sHALF = S(32), S(33), S(34), S(35), S(36)
sSELLO, sSELHI, sCNT = S(37), S(38), S(39)
sOFA, sOFB = S(40), S(41)
sKVA, sKVB = S(42), S(43)
sVVA, sVVB = S(44), S(45)
sKB, sVB, sXB = S(46), S(47), S(48)
sSCALE = S(49)
sXO = S(50)
sT0, sT1, sT2, sT3 = S(52), S(53), S(54), S(55)
sTHR = S(56)
sATT = S(57)

def RAW(s, r): return V(32 * s + 4 * r, 4)
def AF(k): return V(128 + 4 * k, 4)
def BF(s, j): return V(140 + 28 * s + 4 * j, 4)
def QF(j, s): return V(16 * j + 4 * s, 4)
def KF(kt, s): return V(112 + 16 * kt + 4 * s, 4)
def VF(t): return V(144 + 4 * t, 4)
def SB(b, kt): return V(176 + 8 * b + 4 * kt, 4)
def PB(b): return V(192 + 4 * b, 4)
def NEGM(j): return V(200 + 4 * j, 4)
def TMP(k, n=1): return V(228 + k, n)
vKR = V(240);
def vVR(th): return V(241 + th)
vD = V(245); vXRa = V(246); vXRb = V(247); vXD = V(248); vWQ = V(249); vWO = V(250)
vL0 = V(251); vL1 = V(252); vOW0 = V(253); vOW1 = V(254); vLANE = V(255)
def ACC(t, j): return A(32 * j + 4 * t, 4)
def LS(j): return A(224 + 4 * j, 4)
ONES = A(252, 4)

def f32bits(x): return struct.unpack("<I", struct.pack("<f", x))[0]
SCALE = f32bits(1.4426950408889634 * (128 ** -0.5))

def win(i, lo, hi, after=()):
    i.lo, i.hi = lo, hi; i.after = list(after); return i

def srd(dst, lo, hi, off_s, size):
    return [salu("s_add_u32", dst[0], lo, off_s), salu("s_addc_u32", dst[1], hi, 0, rdscc=True),
            smov(dst[2], hexs(size)), smov(dst[3], "0x20000")]

def prologue():
    p = []
    p.append(raw("s_cmp_ge_u32 s2, 256", 'salu', rd=['s2'], wr=['scc']))
    p.append(raw("s_cbranch_scc1 L_end", 'branch'))
    p.append(raw("s_load_dwordx16 s[64:79], s[0:1], 0", 'smem'))
    p.append(raw("s_load_dwordx4 s[80:83], s[0:1], 64", 'smem'))
    p.append(raw("s_load_dwordx2 s[84:85], s[0:1], 96", 'smem'))
    t = [TMP(k) for k in range(8)]
    p.append(valu("v_lshrrev_b32", t[0], 6, V(0)))
    p.append(valu("v_and_b32", vLANE, 63, V(0)))
    p.append(valu("v_readfirstlane_b32", sW, t[0], kind='rfl'))
    p.append(salu("s_and_b32", sHG, "s2", 7))
    p.append(salu("s_lshr_b32", sT0, "s2", 3))
    p.append(salu("s_and_b32", sHALF, sT0, 1))
    p.append(salu("s_lshr_b32", sB, sT0, 1))
    p.append(salu("s_and_b32", sB, sB, 7))
    p.append(salu("s_lshr_b32", sBLK, sT0, 4))
    p.append(smov(sSELLO, "0x05040100")); p.append(smov(sSELHI, "0x07060302"))
    p.append(smov(sSCALE, hex(SCALE)))
    i_, g_, i4, im = t[1], t[2], t[3], t[4]
    p.append(valu("v_and_b32", i_, 15, vLANE))
    p.append(valu("v_lshrrev_b32", g_, 4, vLANE))
    p.append(valu("v_lshrrev_b32", i4, 2, i_))
    p.append(valu("v_and_b32", im, 3, i_))
    p.append(valu("v_xor_b32", t[5], g_, im))
    p.append(valu("v_lshlrev_b32", t[5], 6, t[5]))
    p.append(valu("v_lshl_add_u32", t[5], im, 8, t[5]))
    p.append(valu("v_mul_u32_u24", t[6], KG, i4))
    p.append(valu("v_add_u32", t[5], t[5], t[6]))
    p.append(salu("s_mul_i32", sKB, sW, KSLOT, scc=False))
    p.append(salu("s_mul_i32", sVB, sW, VSLOT, scc=False))
    p.append(salu("s_add_u32", sVB, sVB, VBASE))
    p.append(salu("s_mul_i32", sXB, sW, KG, scc=False))
    p.append(salu("s_add_u32", sXB, sXB, XBASE))
    p.append(valu("v_add_u32", vKR, sKB, t[5]))
    p.append(valu("v_add_u32", vXRa, XBASE, t[5]))
    p.append(valu("v_add_u32", vXRb, XBASE + 2 * XCB, t[5]))
    p.append(valu("v_mul_u32_u24", t[5], VG, g_))
    p.append(valu("v_lshl_add_u32", t[5], i4, 8, t[5]))
    p.append(valu("v_lshl_add_u32", t[5], im, 3, t[5]))
    p.append(valu("v_add_u32", t[5], sVB, t[5]))
    for th in range(4):
        p.append(valu("v_xor_b32", t[6], th, i4))
        p.append(valu("v_lshl_add_u32", vVR(th), t[6], 6, t[5]))
    p.append(valu("v_lshlrev_b32", t[5], 2, g_))
    p.append(valu("v_xor_b32", t[5], t[5], i_))
    p.append(valu("v_lshlrev_b32", t[5], 4, t[5]))
    p.append(valu("v_lshl_add_u32", vD, g_, 8, t[5]))
    p.append(valu("v_lshl_add_u32", vXD, g_, 10, t[5]))
    p.append(valu("v_lshlrev_b32", t[5], 4, i_))
    p.append(valu("v_lshl_add_u32", vWQ, g_, 18, t[5]))
    p.append(valu("v_lshl_add_u32", vWO, g_, 12, t[5]))
    p.append(valu("v_lshlrev_b32", vL0, 4, vLANE))
    p.append(valu("v_add_u32", vL1, VBASE, vL0))
    p.append(valu("v_add_u32", vOW0, sKB, vL0))
    p.append(valu("v_add_u32", vOW1, sVB, vL0))
    p.append(raw("s_waitcnt lgkmcnt(0)", 'salu'))
    p.append(raw(f"s_cmp_eq_u32 {sBLK}, 0", 'salu', rd=[sBLK], wr=['scc']))
    for k in range(5):
        p.append(raw(f"s_cselect_b64 s[{64+2*k}:{65+2*k}], s[{64+2*k}:{65+2*k}], s[{74+2*k}:{75+2*k}]", 'salu'))
    p.append(salu("s_lshl_b32", sT0, sB, 1)); p.append(salu("s_add_u32", sT0, sT0, sHALF))
    p.append(salu("s_mul_i32", sT0, sT0, 114688, scc=False))
    p.append(salu("s_lshl_b32", sT1, sW, 12))
    p.append(salu("s_add_u32", sT0, sT0, sT1))
    p += srd(SRD_X, S(64), S(65), sT0, 114688 - 3 * 4096)
    p.append(salu("s_lshl_b32", sT2, sHG, 2)); p.append(salu("s_add_u32", sT2, sT2, sW))
    p.append(salu("s_lshl_b32", sT0, sT2, 8))
    p += srd(SRD_WQ, S(70), S(71), sT0, 511 * 8192 + 256)
    p.append(salu("s_lshl_b32", sT0, sB, 5)); p.append(salu("s_add_u32", sT0, sT0, sT2))
    p.append(salu("s_lshl_b32", sT0, sT0, 17))
    p += srd(SRD_K, S(66), S(67), sT0, 131072)
    p += srd(SRD_V, S(68), S(69), sT0, 131072)
    p.append(salu("s_lshl_b32", sT0, sHG, 19)); p.append(salu("s_lshl_b32", sT1, sW, 8))
    p.append(salu("s_add_u32", sT0, sT0, sT1))
    p += srd(SRD_WO, S(72), S(73), sT0, 511 * 1024 + 256)
    p.append(salu("s_mul_i32", sT0, "s2", 114688, scc=False))
    p.append(salu("s_mul_i32", sT1, sW, 28672, scc=False))
    p.append(salu("s_add_u32", sT0, sT0, sT1))
    p += srd(SRD_P, S(84), S(85), sT0, 28672)
    return p

def x_dma(cb, j):
    m = salu("s_add_u32", 'm0', sXB, hexs(cb * XCB + j * XBLK))
    o = smov(sXO, hexs(j * 16384 + cb * 256))
    d = buf_dma(vXD, SRD_X, sXO, 0, ('X', cb))
    return [m, o, d]

def wq_load(ks, r):
    cb, s = divmod(ks, 4)
    so = sOFA if r % 2 == 0 else sOFB
    o = smov(so, hexs((128 * cb + 8 * s + r) * 8192))
    return [o, buf_load(RAW(ks % 4, r), vWQ, SRD_WQ, so)]

def wo_load(ks, r):
    wp, u = divmod(ks, 4)
    g = []
    so = sOFA if r < 4 else sOFB
    if r % 4 == 0:
        g.append(smov(so, hexs((wp * 128 + 32 * u + (16 if r >= 4 else 0)) * 1024)))
    g.append(buf_load(RAW(ks % 4, r), vWO, SRD_WO, so, (r % 4) * 1024))
    return g

def kv_dma(which, slot, n, soff):
    if which == 'K':
        m = salu("s_add_u32", 'm0', sKB, hexs(slot * KREG + n * KG - (n % 4) * 1024))
        d = buf_dma(vD, SRD_K, soff, (n % 4) * 1024, ('K', slot), KVFLAGS)
    else:
        m = salu("s_add_u32", 'm0', sVB, hexs(slot * VREG + n * VG - (n % 4) * 1024))
        d = buf_dma(vD, SRD_V, soff, (n % 4) * 1024, ('V', slot), KVFLAGS)
    return [m, d]

KVFLAGS = ""

def chain(groups, lo, hi):
    out = []
    prev = None
    n = len(groups)
    for k, g in enumerate(groups):
        glo = lo + (hi - lo) * k // n
        for ins in g:
            aft = []
            if prev is not None:
                d = 1 if (ins.kind == 'dma') else 0
                aft.append((prev, d))
            win(ins, glo, hi, aft)
            out.append(ins); prev = ins
    return out

def perms(ks, jt):
    out = []
    sel = sSELLO if jt % 2 == 0 else sSELHI
    for q in range(4):
        out.append(valu("v_perm_b32", AF((8 * ks + jt) % 3)[q], RAW(ks % 4, 2 * q + 1)[jt // 2], RAW(ks % 4, 2 * q)[jt // 2], sel))
    return out

def gemm_phase(kind):
    pre = perms(0, 0)
    mf = []; fl = []
    for ks in range(16):
        base = ks * 56
        for jt in range(8):
            for j in range(7):
                c = 0 if ks == 0 else ACC(jt, j)
                mf.append(mfma(ACC(jt, j), AF((8 * ks + jt) % 3), BF(ks % 2, j), c))
        for jt in range(8):
            n = 8 * ks + jt + 1
            if n >= 128: continue
            for q, pi in enumerate(perms(n // 8, n % 8)):
                fl.append(win(pi, 7 * (n - 1) - 1 if n % 8 else 7 * (n - 1), 7 * n - 2))
        if ks + 3 < 16:
            ld = wq_load if kind == 'Q' else wo_load
            fl += chain([ld(ks + 3, r) for r in range(8)], base + 1, base + 40)
        if ks + 1 < 16:
            rd = []
            k1 = ks + 1
            if kind == 'Q':
                cb, s = divmod(k1, 4)
                bar = None
                if s == 0:
                    bar = win(barrier(tok_wait=[('X', cb)]), base + 2, base + 2)
                    bar.kind = 'bar'
                    fl.append(bar)
                for j in range(7):
                    r = ds_read128(BF(k1 % 2, j), vXRa if cb < 2 else vXRb, (cb % 2) * XCB + j * XBLK + s * 16)
                    win(r, base + 4 + 5 * j, base + 48, [(bar, 0)] if bar else [])
                    fl.append(r)
            else:
                wp, u = divmod(k1, 4)
                for j in range(7):
                    off = (u % 2) * (KREG if u < 2 else VREG) + wp * (KSLOT if u < 2 else VSLOT) + j * 1024
                    r = ds_read128(BF(k1 % 2, j), vL0 if u < 2 else vL1, off)
                    win(r, base + 4 + 5 * j, base + 48)
                    fl.append(r)
        if kind == 'Q':
            cb, s = divmod(ks, 4)
            grp = []
            if cb == 0 and s == 0: grp = [x_dma(2, j) for j in range(7)]
            if cb == 0 and s == 1: grp = kv_init('K', 0)
            if cb == 1 and s == 0: grp = [x_dma(3, j) for j in range(7)]
            if cb == 1 and s == 1: grp = kv_init('K', 1)
            if cb == 2 and s == 0: grp = kv_init('V', 0)
            if cb == 3 and s == 0: grp = kv_init('V', 1)
            if grp: fl += chain(grp, base + 3, base + 54)
    return pre + weave(mf, fl, name="gemm" + kind)

def kv_init(which, step):
    g = []
    for n in range(8):
        x = []
        if n % 4 == 0: x.append(smov(sXO, hexs(step * 8192 + (n // 4) * 4096)))
        x += kv_dma(which, step % 2, n, sXO)
        g.append(x)
    return g

def q_start():
    p = []
    for j in range(7):
        g = x_dma(0, j); p += g
    for r in range(8): p += wq_load(0, r)
    for r in range(8): p += wq_load(1, r)
    for j in range(7):
        g = x_dma(1, j); p += g
    for r in range(8): p += wq_load(2, r)
    p.append(valu("v_mov_b32", TMP(0), "0x3f803f80"))
    for q in range(4): p.append(valu("v_accvgpr_write_b32", ONES[q], TMP(0)))
    p.append(barrier(tok_wait=[('X', 0)]))
    for j in range(7):
        p.append(ds_read128(BF(0, j), vXRa, j * XBLK))
    return p

def q_convert():
    p = []
    for j in range(7):
        for s in range(4):
            t = [TMP(k) for k in range(8)]
            for jt in range(8): p.append(valu("v_accvgpr_read_b32", t[jt], ACC(jt, j)[s]))
            for jt in range(8): p.append(valu("v_mul_f32", t[jt], sSCALE, t[jt]))
            for u in range(4): p.append(valu("v_cvt_pk_bf16_f32", QF(j, s)[u], t[2 * u], t[2 * u + 1]))
    return p

def k_read(slot, kt, s):
    return ds_read128(KF(kt, s), vKR, slot * KREG + kt * XBLK + s * 16, ldsrd=('K', slot), tok_wait=[('K', slot)])

def v_read(slot, t, hh):
    return ds_read_tr(VF(t)[2 * hh:2 * hh + 2], vVR(t // 2), slot * VREG + hh * 4 * VG + (t % 2) * 32, ldsrd=('V', slot), tok_wait=[('V', slot)])

def qk(u):
    j = u % 7
    out = []
    for kt in range(2):
        for s in range(4):
            out.append(mfma(SB(u % 2, kt), KF(kt, s), QF(j, s), NEGM(j) if s == 0 else SB(u % 2, kt)))
    return out

def pv(u):
    j = u % 7
    out = [mfma(ACC(t, j), VF(t), PB(u % 2), ACC(t, j)) for t in range(8)]
    out.append(mfma(LS(j), ONES, PB(u % 2), LS(j)))
    return out

def sm(u):
    ex = []; cv = []
    for kt in range(2):
        for r in range(4):
            x = SB(u % 2, kt)[r]
            ex.append(valu("v_exp_f32", x, x, kind='trans'))
    for q in range(4):
        kt, r = q // 2, 2 * (q % 2)
        cv.append(valu("v_cvt_pk_bf16_f32", PB(u % 2)[q], SB(u % 2, kt)[r], SB(u % 2, kt)[r + 1]))
    return ex, cv

def lane_max(x, t):
    return [valu("v_mov_b32", t, x),
            I(f"v_permlane32_swap_b32 {x}, {t}", 'perml', rd=[x, t], wr=[x, t]),
            valu("v_max_f32", x, x, t),
            valu("v_mov_b32", t, x),
            I(f"v_permlane16_swap_b32 {x}, {t}", 'perml', rd=[x, t], wr=[x, t]),
            valu("v_max_f32", x, x, t)]

def zero_acc():
    p = []
    for k in range(63):
        for q in range(4): p.append(valu("v_accvgpr_write_b32", A(4 * k + q), 0))
    return p

def att_prologue():
    p = []
    for kt in range(2):
        for s in range(4): p.append(k_read(0, kt, s))
    p += zero_acc()
    for j in range(7):
        for s in range(4):
            p.append(mfma(NEGM(j), KF(0, s), QF(j, s), 0 if s == 0 else NEGM(j)))
    for j in range(7):
        n = NEGM(j)
        p.append(valu("v_max3_f32", n[0], n[0], n[1], n[2]))
        p.append(valu("v_max_f32", n[0], n[0], n[3]))
    seqs = [lane_max(NEGM(j)[0], NEGM(j)[1]) for j in range(7)]
    for k in range(6):
        for j in range(7): p.append(seqs[j][k])
    for j in range(7):
        n = NEGM(j)
        for q in (1, 2, 3, 0): p.append(valu("v_sub_f32", n[q], 0, n[0]))
    return p

def att_start():
    p = []
    for t in range(8):
        for hh in range(2): p.append(v_read(0, t, hh))
    p += qk(0) + qk(1)
    ex, cv = sm(0)
    p += ex + cv
    p.append(smov(sKVA, 2 * 8192)); p.append(smov(sKVB, 2 * 8192 + 4096))
    p.append(smov(sCNT, 8))
    return p

def att_body():
    mf = []; fl = []
    for u in range(14):
        mf += qk(u + 2) + pv(u)
    NP = 17
    last = 14 * NP - 1
    for u in range(14):
        b = u * NP
        ex, cv = sm(u + 1)
        for k, e in enumerate(ex):
            kt = k // 4
            lo = max(0, b - NP + (7 if kt == 0 else 11))
            win(e, lo, min(last - 2, b + NP - 3 + (0 if kt == 0 else 3)))
        for q, c in enumerate(cv):
            kt = q // 2
            win(c, max(0, b - 1), min(last, b + NP - 1 + (0 if kt == 0 else 3)), [(ex[2 * q], 1), (ex[2 * q + 1], 1)])
        fl += ex + cv
        if u % 7 == 4:
            slot = (u // 7 + 1) % 2
            for kt in range(2):
                for s in range(4):
                    g = b + 4 * kt + s
                    fl.append(win(k_read(slot, kt, s), g, g + 3))
        if u % 7 == 6:
            slot = (u // 7 + 1) % 2
            for t in range(8):
                for hh in range(2):
                    g = b + 8 + t
                    fl.append(win(v_read(slot, t, hh), g, min(last, g + 2)))
    for e in range(2):
        b = e * 7 * NP
        grp = []
        for n in range(8): grp.append(kv_dma('K', e, n, sKVA if n < 4 else sKVB))
        for n in range(8): grp.append(kv_dma('V', e, n, sKVA if n < 4 else sKVB))
        adv = [salu("s_add_u32", sKVA, sKVA, 8192), salu("s_add_u32", sKVB, sKVB, 8192)]
        grp.append(adv)
        fl += chain(grp, b + 10, b + 4 * NP - 2)
    cnt = win(salu("s_sub_u32", sCNT, sCNT, 1), 5 * NP, 13 * NP)
    fl.append(cnt)
    cmp_ = win(raw(f"s_cmp_lg_u32 {sCNT}, 0", 'salu', rd=[sCNT], wr=['scc']), last, last, [(cnt, 1)])
    fl.append(cmp_)
    body = weave(mf, fl, name="att")
    return [label("L_att")] + body + [raw("s_cbranch_scc1 L_att", 'branch')]

def o_convert():
    p = [waitall()]
    for j in range(7):
        rl = TMP(8)
        p.append(valu("v_accvgpr_read_b32", rl, LS(j)[0]))
        p.append(valu("v_rcp_f32", rl, rl, kind='trans'))
        for u in range(4):
            t = [TMP(k) for k in range(8)]
            o = V(176 + 4 * (u % 2), 4)
            for k in range(8): p.append(valu("v_accvgpr_read_b32", t[k], ACC(2 * u + k // 4, j)[k % 4]))
            for k in range(8): p.append(valu("v_mul_f32", t[k], t[k], rl))
            for q in range(4): p.append(valu("v_cvt_pk_bf16_f32", o[q], t[2 * q], t[2 * q + 1]))
            p.append(ds_write128(vOW0 if u < 2 else vOW1, o, (u % 2) * (KREG if u < 2 else VREG) + j * 1024))
    return p

def o_start_loads():
    p = []
    for ks in range(3):
        for r in range(8): p += wo_load(ks, r)
    return p

def o_start():
    p = [barrier()]
    for j in range(7):
        p.append(ds_read128(BF(0, j), vL0, j * 1024))
    return p

def epilogue():
    p = []
    for j in range(7):
        p.append(smov(sOFA, hexs(j * 4096)))
        for r in range(4):
            t = [V(16 * (r % 2) + k) for k in range(8)]
            o = V(64 + 4 * ((4 * j + r) % 8), 4)
            for jt in range(8): p.append(valu("v_accvgpr_read_b32", t[jt], ACC(jt, j)[r]))
            for q in range(4): p.append(valu("v_cvt_pk_bf16_f32", o[q], t[2 * q], t[2 * q + 1]))
            p.append(buf_store(o, vL0, SRD_P, sOFA, r * 1024))
    return p

def build_main():
    parts = {}
    prog = []
    prog += prologue()
    prog += q_start()
    gq = gemm_phase('Q'); prog += gq
    qc = q_convert(); prog += qc
    ap = att_prologue() + att_start(); prog += ap
    body = att_body(); prog.append(Loop(body))
    ol = o_start_loads()
    oc = o_convert()
    prog += [oc[0]] + ol + oc[1:]
    prog += o_start()
    go = gemm_phase('O'); prog += go
    ep = epilogue(); prog += ep
    prog.append(label("L_end"))
    prog.append(raw("s_endpgm", 'branch'))
    insert_waits(prog)
    insert_nops(prog)
    for nm, x in (("gemmQ", gq), ("qconv", qc), ("attpro", ap), ("attbody", body), ("oconv", oc), ("gemmO", go), ("epi", ep)):
        print(f"   est {nm}: {estimate(x)} cycles, {len(x)} instrs")
    return emit(prog)

REDUCE = """
.globl reduce_kernel
.p2align 8
.type reduce_kernel,@function
reduce_kernel:
    s_cmp_ge_u32 s2, 896
    s_cbranch_scc1 L_rend
    s_load_dwordx2 s[4:5], s[0:1], 80
    s_load_dwordx2 s[6:7], s[0:1], 96
    s_mov_b32 s3, 0x24924925
    s_mul_hi_u32 s16, s2, s3
    s_mul_i32 s17, s16, 7
    s_sub_u32 s17, s2, s17              ; j
    s_and_b32 s18, s16, 3               ; w
    s_lshr_b32 s19, s16, 2
    s_mul_i32 s20, s19, 917504          ; rest*8*114688
    s_mul_i32 s21, s18, 28672
    s_add_u32 s20, s20, s21
    s_lshl_b32 s21, s17, 12
    s_add_u32 s20, s20, s21             ; + j*4096
    v_lshlrev_b32 v1, 4, v0             ; (r*64 + lane)*16
    s_waitcnt lgkmcnt(0)
    s_add_u32 s8, s6, s20
    s_addc_u32 s9, s7, 0
    s_mov_b32 s10, 806912               ; 7*114688 + 4096
    s_mov_b32 s11, 0x20000
    s_mov_b32 s12, s4
    s_mov_b32 s13, s5
    s_mov_b32 s14, 3670016
    s_mov_b32 s15, 0x20000
    s_mov_b32 s22, 114688
    s_mov_b32 s23, 229376
    s_mov_b32 s24, 344064
    s_mov_b32 s25, 458752
    s_mov_b32 s26, 573440
    s_mov_b32 s27, 688128
    s_mov_b32 s28, 802816
    buffer_load_dwordx4 v[4:7], v1, s[8:11], 0 offen
    buffer_load_dwordx4 v[8:11], v1, s[8:11], s22 offen
    buffer_load_dwordx4 v[12:15], v1, s[8:11], s23 offen
    buffer_load_dwordx4 v[16:19], v1, s[8:11], s24 offen
    buffer_load_dwordx4 v[20:23], v1, s[8:11], s25 offen
    buffer_load_dwordx4 v[24:27], v1, s[8:11], s26 offen
    buffer_load_dwordx4 v[28:31], v1, s[8:11], s27 offen
    buffer_load_dwordx4 v[32:35], v1, s[8:11], s28 offen
    s_and_b32 s29, s19, 15
    s_mul_i32 s29, s29, 112
    s_lshl_b32 s30, s17, 4
    s_add_u32 s29, s29, s30
    s_lshl_b32 s29, s29, 11             ; *2048 bytes
    s_lshr_b32 s30, s19, 4
    s_lshl_b32 s30, s30, 10
    s_add_u32 s29, s29, s30
    s_lshl_b32 s30, s18, 8
    s_add_u32 s29, s29, s30
    v_and_b32 v2, 15, v0
    v_lshlrev_b32 v2, 11, v2
    v_bfe_u32 v3, v0, 4, 2
    v_lshl_add_u32 v2, v3, 6, v2
    v_lshrrev_b32 v3, 6, v0
    v_lshl_add_u32 v2, v3, 4, v2
    s_mov_b32 s31, 0xffff0000
"""

def build_reduce():
    L = REDUCE.strip("\n").split("\n")
    for p in range(8):
        L.append(f"    s_waitcnt vmcnt({7-p})")
        for d in range(4):
            src = 4 + 4 * p + d
            if p == 0:
                L.append(f"    v_lshlrev_b32 v{36+d}, 16, v{src}")
                L.append(f"    v_and_b32 v{40+d}, s31, v{src}")
            else:
                L.append(f"    v_lshlrev_b32 v44, 16, v{src}")
                L.append(f"    v_and_b32 v45, s31, v{src}")
                L.append(f"    v_add_f32 v{36+d}, v{36+d}, v44")
                L.append(f"    v_add_f32 v{40+d}, v{40+d}, v45")
    for d in range(4):
        L.append(f"    v_cvt_pk_bf16_f32 v{4+d}, v{36+d}, v{40+d}")
    L.append("    buffer_store_dwordx4 v[4:7], v2, s[12:15], s29 offen")
    L.append("L_rend:")
    L.append("    s_endpgm")
    return L

HEADER = open("cdna_kernels/" + NAME + ".s.ref").read().split("; Override launch geometry")[0]

def main(outp):
    L = [HEADER.rstrip("\n")]
    L.append(f"; @launch kernel=attn_kernel grid=(256,1,1) block=(256,1,1) lds={LDS_TOTAL}")
    L.append("; @launch kernel=reduce_kernel grid=(896,1,1) block=(256,1,1) lds=0")
    L.append('.amdgcn_target "amdgcn-amd-amdhsa--gfx950"')
    L.append(".text")
    L.append(".globl attn_kernel\n.p2align 8\n.type attn_kernel,@function\nattn_kernel:")
    L += build_main()
    L += build_reduce()
    L.append('.section .rodata,"a"')
    for nm, vg, acc in (("attn_kernel", 512, 256), ("reduce_kernel", 48, 48)):
        L.append(f""".p2align 6
.amdhsa_kernel {nm}
  .amdhsa_next_free_vgpr {vg}
  .amdhsa_next_free_sgpr 102
  .amdhsa_accum_offset {acc}
  .amdhsa_group_segment_fixed_size 0
  .amdhsa_kernarg_size 104
  .amdhsa_user_sgpr_count 2
  .amdhsa_user_sgpr_kernarg_segment_ptr 1
  .amdhsa_system_sgpr_workgroup_id_x 1
.end_amdhsa_kernel""")
    open(outp, "w").write("\n".join(L) + "\n")

if __name__ == "__main__":
    main(sys.argv[1] if len(sys.argv) > 1 else "cdna_kernels/" + NAME + ".s")
```

```python
import re

def R(prefix, lo, n=1):
    return [f"{prefix}{lo+i}" for i in range(n)]

def rng(prefix, lo, n):
    return f"{prefix}{lo}" if n == 1 else f"{prefix}[{lo}:{lo+n-1}]"

class Reg:
    def __init__(self, p, lo, n=1):
        self.p, self.lo, self.n = p, lo, n
    def __str__(self): return rng(self.p, self.lo, self.n)
    def regs(self): return R(self.p, self.lo, self.n)
    def __getitem__(self, i):
        if isinstance(i, slice):
            a = i.start or 0; b = i.stop if i.stop is not None else self.n
            assert 0 <= a < b <= self.n
            return Reg(self.p, self.lo + a, b - a)
        assert 0 <= i < self.n
        return Reg(self.p, self.lo + i, 1)

def V(lo, n=1): return Reg('v', lo, n)
def A(lo, n=1): return Reg('a', lo, n)
def S(lo, n=1): return Reg('s', lo, n)

def _regs(x):
    out = []
    for y in x:
        if isinstance(y, Reg): out += y.regs()
        elif isinstance(y, str) and re.fullmatch(r"(m0|vcc|scc|exec|[vas]\d+)", y): out.append(y)
    return out

class I:
    def __init__(self, text, kind, rd=(), wr=(), tok_wait=(), tok=None, ldsrd=None, srcc=None, comment=None):
        self.text = text; self.kind = kind
        self.rd = set(_regs(rd)); self.wr = set(_regs(wr))
        self.tok_wait = tuple(tok_wait)
        self.tok = tok
        self.ldsrd = ldsrd
        self.srcc = set(_regs([srcc])) if srcc is not None else set()
        self.comment = comment
        self.lo = 0; self.hi = 10**9; self.after = []
        self.gap = None
        self.pre_wait = None
        self.pre_nop = 0
    def cost(self):
        return 2 if self.kind == 'trans' else 1
    def __repr__(self): return self.text

VM_KINDS = ('vld', 'dma', 'vst')
LGKM_KINDS = ('dsr', 'dsw')
VALU_KINDS = ('valu', 'trans', 'perml', 'rfl')

def mfma(d, a, b, c):
    cs = str(c) if isinstance(c, Reg) else str(c)
    return I(f"v_mfma_f32_16x16x32_bf16 {d}, {a}, {b}, {cs}", 'mfma', rd=[a, b] + ([c] if isinstance(c, Reg) else []), wr=[d],
             srcc=c if isinstance(c, Reg) else None)

def valu(op, d, *src, kind='valu', extra_rd=(), extra_wr=()):
    return I(f"{op} {d}, " + ", ".join(str(s) for s in src), kind, rd=list(src) + list(extra_rd), wr=[d] + list(extra_wr))

def salu(op, d, *src, scc=True, rdscc=False):
    wr = [d] + (['scc'] if scc else [])
    rd = list(src) + (['scc'] if rdscc else [])
    return I(f"{op} {d}, " + ", ".join(str(s) for s in src), 'salu', rd=rd, wr=wr)

def smov(d, s): return salu("s_mov_b32", d, s, scc=False)

def hexs(x): return hex(x) if x > 64 else str(x)

def ds_read128(d, addr, off, ldsrd=None, tok_wait=()):
    assert 0 <= off < 65536, off
    return I(f"ds_read_b128 {d}, {addr} offset:{off}", 'dsr', rd=[addr], wr=[d], ldsrd=ldsrd, tok_wait=tok_wait)

def ds_read_tr(d, addr, off, ldsrd=None, tok_wait=()):
    assert 0 <= off < 65536, off
    return I(f"ds_read_b64_tr_b16 {d}, {addr} offset:{off}", 'dsr', rd=[addr], wr=[d], ldsrd=ldsrd, tok_wait=tok_wait)

def ds_write128(addr, s, off, tok_wait=()):
    assert 0 <= off < 65536, off
    return I(f"ds_write_b128 {addr}, {s} offset:{off}", 'dsw', rd=[addr, s], tok_wait=tok_wait)

def buf_load(d, voff, srd, soff, off=0, flags=""):
    assert 0 <= off < 4096
    n = {1: "dword", 2: "dwordx2", 4: "dwordx4"}[d.n]
    o = f" offset:{off}" if off else ""
    f = (" " + flags) if flags else ""
    return I(f"buffer_load_{n} {d}, {voff}, {srd}, {soff} offen{o}{f}", 'vld', rd=[voff, srd, soff], wr=[d])

def buf_dma(voff, srd, soff, off, tok, flags=""):
    assert 0 <= off < 4096
    o = f" offset:{off}" if off else ""
    f = (" " + flags) if flags else ""
    return I(f"buffer_load_dwordx4 {voff}, {srd}, {soff} offen{o}{f} lds", 'dma', rd=[voff, srd, soff, 'm0'], tok=tok)

def buf_store(s, voff, srd, soff, off=0, flags=""):
    assert 0 <= off < 4096
    n = {1: "dword", 2: "dwordx2", 4: "dwordx4"}[s.n]
    o = f" offset:{off}" if off else ""
    f = (" " + flags) if flags else ""
    return I(f"buffer_store_{n} {s}, {voff}, {srd}, {soff} offen{o}{f}", 'vst', rd=[s, voff, srd, soff])

def barrier(tok_wait=(), lgkm0=True):
    i = I("s_barrier", 'bar', tok_wait=tok_wait)
    i.lgkm0 = lgkm0
    return i

def label(name): return I(f"{name}:", 'label')
def raw(text, kind='salu', rd=(), wr=()): return I(text, kind, rd=rd, wr=wr)
def waitall(): return I("s_waitcnt vmcnt(0) lgkmcnt(0)", 'waitall')

def weave(mf, fillers, vec_cap=2, name=""):
    n = len(mf)
    gaps_s = [[] for _ in range(n)]
    gaps_v = [[] for _ in range(n)]
    pend = list(fillers)
    for k, f in enumerate(pend):
        f.gap = None; f._ord = k
        f.hi = min(f.hi, n - 1)
        assert f.lo <= f.hi, (f.text, f.lo, f.hi)
    over = 0
    for g in range(n):
        cap = vec_cap; scap = 1
        while True:
            el = []
            for f in pend:
                if f.lo > g: continue
                ok = True
                for (o, d) in f.after:
                    if o.gap is None or o.gap + d > g: ok = False; break
                el.append(f) if ok else None
            if not el: break
            el.sort(key=lambda f: (f.hi, f._ord))
            placed = None
            for f in el:
                must = f.hi <= g
                if f.kind == 'salu' and scap > 0 and not any(o.gap == g for (o, d) in f.after):
                    gaps_s[g].append(f); scap -= 1; placed = f; break
                if f.kind == 'salu' and not must:
                    continue
                if f.cost() <= cap or must:
                    if f.cost() > cap: over += f.cost() - max(cap, 0)
                    gaps_v[g].append(f); cap -= f.cost(); placed = f; break
            if placed is None: break
            placed.gap = g
            pend.remove(placed)
    assert not pend, [(f.text, f.lo, f.hi) for f in pend]
    out = []
    for g in range(n):
        out.append(mf[g]); out += gaps_s[g]; out += gaps_v[g]
    if over: print(f"[weave {name}] overflow slots: {over}")
    return out

class Loop:
    def __init__(self, body): self.body = body

def flatten(prog, times=2):
    out = []
    for x in prog:
        if isinstance(x, Loop):
            for _ in range(times): out += x.body
        else: out.append(x)
    return out

def insert_waits(prog):
    allins = flatten(prog, 1)
    for i in allins: i.pre_wait = None
    changed = True
    it = 0
    while changed:
        changed = False; it += 1
        assert it < 20
        seq = flatten(prog, 3)
        vm = []; lg = []
        hoist = None
        vm_since = 0; lg_since = 0
        prev_was_mfma = False
        for ins in seq:
            if prev_was_mfma:
                hoist = ins; vm_since = 0; lg_since = 0
            if ins.kind in ('label', 'branch', 'bar'):
                pass
            if ins.pre_wait is not None:
                a, b = ins.pre_wait
                if a is not None: vm = vm[max(0, len(vm) - a):]
                if b is not None: lg = lg[max(0, len(lg) - b):]
            if ins.kind == 'waitall':
                vm = []; lg = []
            if ins.kind == 'lg0':
                lg = []
            touched = ins.rd | ins.wr
            need_vm = None; need_lg = None
            for k, o in enumerate(vm):
                hit = (o.wr & touched) or (o.tok is not None and o.tok in ins.tok_wait)
                if hit: need_vm = len(vm) - 1 - k
            for k, o in enumerate(lg):
                hit = (o.wr & touched) or (ins.kind == 'dma' and o.ldsrd is not None and o.ldsrd == ins.tok)
                if ins.kind == 'bar' and getattr(ins, 'lgkm0', False): hit = True
                if hit: need_lg = len(lg) - 1 - k
            if need_vm is not None or need_lg is not None:
                tgt = ins; nv, nl = need_vm, need_lg
                if hoist is not None and hoist is not ins:
                    hv = None if nv is None else nv - vm_since
                    hl = None if nl is None else nl - lg_since
                    if (hv is None or hv >= 0) and (hl is None or hl >= 0):
                        tgt = hoist; nv, nl = hv, hl
                old = tgt.pre_wait or (None, None)
                def mn(a, b): return b if a is None else (a if b is None else min(a, b))
                new = (mn(old[0], nv), mn(old[1], nl))
                if new[0] is not None: new = (min(new[0], 63), new[1])
                if new[1] is not None: new = (new[0], min(new[1], 15))
                if new != old:
                    tgt.pre_wait = new; changed = True
                if need_vm is not None: vm = vm[len(vm) - need_vm:] if need_vm else []
                if need_lg is not None: lg = lg[len(lg) - need_lg:] if need_lg else []
            if ins.kind in VM_KINDS:
                vm.append(ins); vm_since += 1
                assert len(vm) <= 63 or True
            if ins.kind in LGKM_KINDS:
                lg.append(ins); lg_since += 1
            if ins.kind in ('label', 'branch', 'bar', 'waitall', 'lg0', 'smem'):
                hoist = None
            prev_was_mfma = ins.kind == 'mfma'

def insert_nops(prog, verbose=True):
    allins = flatten(prog, 1)
    for i in allins: i.pre_nop = 0
    changed = True
    while changed:
        changed = False
        seq = flatten(prog, 3)
        t = 0
        last_valu_w = {}; last_trans_w = {}; last_mfma_w = {}; last_mfma_c = {}; last_salu_w = {}; last_valu_sw = {}; last_store_rd = {}
        for ins in seq:
            if ins.kind == 'label': continue
            if ins.pre_wait is not None: t += 1
            t += ins.pre_nop
            need = 0
            def req(tp, d):
                nonlocal need
                need = max(need, d - (t - tp - 1))
            k = ins.kind
            if k == 'mfma':
                for r in ins.rd:
                    if r in last_valu_w: req(last_valu_w[r], 2)
                    if r in last_mfma_w:
                        tp, prod = last_mfma_w[r]
                        if r in ins.srcc and not (r in (ins.rd - ins.srcc)):
                            if prod.wr == ins.srcc: pass
                            else: req(tp, 6)
                        else: req(tp, 8)
                for r in ins.wr:
                    if r in last_mfma_w and r not in ins.srcc:
                        tp, prod = last_mfma_w[r]
                        req(tp, 6)
            else:
                if k in VALU_KINDS or k in VM_KINDS or k in LGKM_KINDS:
                    for r in ins.rd | ins.wr:
                        if r in last_mfma_w: req(last_mfma_w[r][0], 8)
                if k in VALU_KINDS:
                    for r in ins.wr:
                        if r in last_mfma_c: req(last_mfma_c[r], 3)
                        if r in last_store_rd: req(last_store_rd[r], 2)
                    if k != 'trans':
                        for r in ins.rd:
                            if r in last_trans_w: req(last_trans_w[r], 1)
                    for r in ins.rd:
                        if r in last_valu_sw: req(last_valu_sw[r], 2)
                    if k == 'perml':
                        for r in ins.rd:
                            if r in last_valu_w: req(last_valu_w[r], 2)
                    if k == 'rfl':
                        for r in ins.rd:
                            if r in last_valu_w: req(last_valu_w[r], 1)
                if k in VM_KINDS or k in LGKM_KINDS:
                    for r in ins.wr:
                        if r in last_mfma_c: req(last_mfma_c[r], 3)
                        if r in last_store_rd: req(last_store_rd[r], 1)
                if k in VM_KINDS:
                    for r in ins.rd:
                        if r in last_valu_sw: req(last_valu_sw[r], 5)
                if k == 'dma' and 'm0' in last_salu_w: req(last_salu_w['m0'], 1)
                if k == 'salu':
                    for r in ins.rd:
                        if r in last_valu_sw: req(last_valu_sw[r], 2)
            if need > 0:
                ins.pre_nop += need; t += need; changed = True
            if k == 'mfma':
                for r in ins.wr: last_mfma_w[r] = (t, ins)
                for r in ins.srcc: last_mfma_c[r] = t
            if k in VALU_KINDS:
                for r in ins.wr:
                    if r[0] in 'va' and r != 'vcc':
                        last_valu_w[r] = t
                        if k == 'trans': last_trans_w[r] = t
                        else: last_trans_w.pop(r, None)
                        last_mfma_w.pop(r, None)
                    else: last_valu_sw[r] = t
            if k == 'salu':
                for r in ins.wr: last_salu_w[r] = t; last_valu_sw.pop(r, None)
            if k == 'vst':
                for r in ins.rd:
                    if r[0] in 'va': last_store_rd[r] = t
            t += 1
    if verbose:
        tot = sum(i.pre_nop for i in allins)
        print(f"[nops] total inserted wait states: {tot}")

def emit(prog):
    lines = []
    for ins in flatten(prog, 1):
        if ins.kind == 'label':
            assert ins.pre_wait is None and ins.pre_nop == 0
            lines.append(ins.text); continue
        if ins.pre_wait is not None:
            a, b = ins.pre_wait
            w = "s_waitcnt"
            if a is not None: w += f" vmcnt({a})"
            if b is not None: w += f" lgkmcnt({b})"
            lines.append("    " + w)
        n = ins.pre_nop
        while n > 0:
            m = min(n, 16); lines.append(f"    s_nop {m-1}"); n -= m
        lines.append("    " + ins.text + (f"    ; {ins.comment}" if ins.comment else ""))
    return lines

def estimate(seq):
    t = 0; last_mf = -100
    for ins in seq:
        if ins.kind == 'label': continue
        if ins.pre_wait is not None: t += 1
        if ins.pre_nop: t += ins.pre_nop
        k = ins.kind
        if k == 'mfma':
            t = max(t, last_mf + 4); last_mf = t; t += 1
        elif k in ('salu', 'bar', 'branch', 'waitall', 'lg0', 'smem'):
            t += 1
        else:
            t = max(t, last_mf + 2); t += ins.cost()
    return t * 4
```

```python
import sys, struct
from asmlib import *

NAME = "concat_heads__mha_block_cached__gqa_block_cached__near_ridge"

KG = 1040
VG = 1056
KSLOT = 8 * KG
VSLOT = 8 * VG
KREG = 4 * KSLOT
VREG = 4 * VSLOT
VBASE = 2 * KREG
XBLK = 4 * KG
XCB = 7 * XBLK
LDS_TOTAL = 163840
XBASE = LDS_TOTAL - 4 * XCB

SRD_X, SRD_WQ, SRD_K, SRD_V, SRD_WO, SRD_P = S(8, 4), S(12, 4), S(16, 4), S(20, 4), S(24, 4), S(28, 4)
sW, sHG, sB, sBLK, sHALF = S(32), S(33), S(34), S(35), S(36)
sSELLO, sSELHI, sCNT = S(37), S(38), S(39)
sOFA, sOFB = S(40), S(41)
sKVA, sKVB = S(42), S(43)
sVVA, sVVB = S(44), S(45)
sKB, sVB, sXB = S(46), S(47), S(48)
sSCALE = S(49)
sXO = S(50)
sT0, sT1, sT2, sT3 = S(52), S(53), S(54), S(55)
sTHR = S(56)
sATT = S(57)

def RAW(s, r): return V(32 * s + 4 * r, 4)
def AF(k): return V(128 + 4 * k, 4)
def BF(s, j): return V(140 + 28 * s + 4 * j, 4)
def QF(j, s): return V(16 * j + 4 * s, 4)
def KF(kt, s): return V(112 + 16 * kt + 4 * s, 4)
def VF(t): return V(144 + 4 * t, 4)
def SB(b, kt): return V(176 + 8 * b + 4 * kt, 4)
def PB(b): return V(192 + 4 * b, 4)
def NEGM(j): return V(200 + 4 * j, 4)
def TMP(k, n=1): return V(228 + k, n)
vKR = V(240);
def vVR(th): return V(241 + th)
vD = V(245); vXRa = V(246); vXRb = V(247); vXD = V(248); vWQ = V(249); vWO = V(250)
vL0 = V(251); vL1 = V(252); vOW0 = V(253); vOW1 = V(254); vLANE = V(255)
def ACC(t, j): return A(32 * j + 4 * t, 4)
def LS(j): return A(224 + 4 * j, 4)
ONES = A(252, 4)

def f32bits(x): return struct.unpack("<I", struct.pack("<f", x))[0]
SCALE = f32bits(1.4426950408889634 * (128 ** -0.5))

def win(i, lo, hi, after=()):
    i.lo, i.hi = lo, hi; i.after = list(after); return i

def srd(dst, lo, hi, off_s, size):
    return [salu("s_add_u32", dst[0], lo, off_s), salu("s_addc_u32", dst[1], hi, 0, rdscc=True),
            smov(dst[2], hexs(size)), smov(dst[3], "0x20000")]

def prologue():
    p = []
    p.append(raw("s_cmp_ge_u32 s2, 256", 'salu', rd=['s2'], wr=['scc']))
    p.append(raw("s_cbranch_scc1 L_end", 'branch'))
    p.append(raw("s_load_dwordx16 s[64:79], s[0:1], 0", 'smem'))
    p.append(raw("s_load_dwordx4 s[80:83], s[0:1], 64", 'smem'))
    p.append(raw("s_load_dwordx2 s[84:85], s[0:1], 96", 'smem'))
    t = [TMP(k) for k in range(8)]
    p.append(valu("v_lshrrev_b32", t[0], 6, V(0)))
    p.append(valu("v_and_b32", vLANE, 63, V(0)))
    p.append(valu("v_readfirstlane_b32", sW, t[0], kind='rfl'))
    p.append(salu("s_and_b32", sHG, "s2", 7))
    p.append(salu("s_lshr_b32", sT0, "s2", 3))
    p.append(salu("s_and_b32", sHALF, sT0, 1))
    p.append(salu("s_lshr_b32", sB, sT0, 1))
    p.append(salu("s_and_b32", sB, sB, 7))
    p.append(salu("s_lshr_b32", sBLK, sT0, 4))
    p.append(smov(sSELLO, "0x05040100")); p.append(smov(sSELHI, "0x07060302"))
    p.append(smov(sSCALE, hex(SCALE)))
    i_, g_, i4, im = t[1], t[2], t[3], t[4]
    p.append(valu("v_and_b32", i_, 15, vLANE))
    p.append(valu("v_lshrrev_b32", g_, 4, vLANE))
    p.append(valu("v_lshrrev_b32", i4, 2, i_))
    p.append(valu("v_and_b32", im, 3, i_))
    p.append(valu("v_xor_b32", t[5], g_, im))
    p.append(valu("v_lshlrev_b32", t[5], 6, t[5]))
    p.append(valu("v_lshl_add_u32", t[5], im, 8, t[5]))
    p.append(valu("v_mul_u32_u24", t[6], KG, i4))
    p.append(valu("v_add_u32", t[5], t[5], t[6]))
    p.append(salu("s_mul_i32", sKB, sW, KSLOT, scc=False))
    p.append(salu("s_mul_i32", sVB, sW, VSLOT, scc=False))
    p.append(salu("s_add_u32", sVB, sVB, VBASE))
    p.append(salu("s_mul_i32", sXB, sW, KG, scc=False))
    p.append(salu("s_add_u32", sXB, sXB, XBASE))
    p.append(valu("v_add_u32", vKR, sKB, t[5]))
    p.append(valu("v_add_u32", vXRa, XBASE, t[5]))
    p.append(valu("v_add_u32", vXRb, XBASE + 2 * XCB, t[5]))
    p.append(valu("v_mul_u32_u24", t[5], VG, g_))
    p.append(valu("v_lshl_add_u32", t[5], i4, 8, t[5]))
    p.append(valu("v_lshl_add_u32", t[5], im, 3, t[5]))
    p.append(valu("v_add_u32", t[5], sVB, t[5]))
    for th in range(4):
        p.append(valu("v_xor_b32", t[6], th, i4))
        p.append(valu("v_lshl_add_u32", vVR(th), t[6], 6, t[5]))
    p.append(valu("v_lshlrev_b32", t[5], 2, g_))
    p.append(valu("v_xor_b32", t[5], t[5], i_))
    p.append(valu("v_lshlrev_b32", t[5], 4, t[5]))
    p.append(valu("v_lshl_add_u32", vD, g_, 8, t[5]))
    p.append(valu("v_lshl_add_u32", vXD, g_, 10, t[5]))
    p.append(valu("v_lshlrev_b32", t[5], 4, i_))
    p.append(valu("v_lshl_add_u32", vWQ, g_, 18, t[5]))
    p.append(valu("v_lshl_add_u32", vWO, g_, 12, t[5]))
    p.append(valu("v_lshlrev_b32", vL0, 4, vLANE))
    p.append(valu("v_add_u32", vL1, VBASE, vL0))
    p.append(valu("v_add_u32", vOW0, sKB, vL0))
    p.append(valu("v_add_u32", vOW1, sVB, vL0))
    p.append(raw("s_waitcnt lgkmcnt(0)", 'salu'))
    p.append(raw(f"s_cmp_eq_u32 {sBLK}, 0", 'salu', rd=[sBLK], wr=['scc']))
    for k in range(5):
        p.append(raw(f"s_cselect_b64 s[{64+2*k}:{65+2*k}], s[{64+2*k}:{65+2*k}], s[{74+2*k}:{75+2*k}]", 'salu'))
    p.append(salu("s_lshl_b32", sT0, sB, 1)); p.append(salu("s_add_u32", sT0, sT0, sHALF))
    p.append(salu("s_mul_i32", sT0, sT0, 114688, scc=False))
    p.append(salu("s_lshl_b32", sT1, sW, 12))
    p.append(salu("s_add_u32", sT0, sT0, sT1))
    p += srd(SRD_X, S(64), S(65), sT0, 114688 - 3 * 4096)
    p.append(salu("s_lshl_b32", sT2, sHG, 2)); p.append(salu("s_add_u32", sT2, sT2, sW))
    p.append(salu("s_lshl_b32", sT0, sT2, 8))
    p += srd(SRD_WQ, S(70), S(71), sT0, 511 * 8192 + 256)
    p.append(salu("s_lshl_b32", sT0, sB, 5)); p.append(salu("s_add_u32", sT0, sT0, sT2))
    p.append(salu("s_lshl_b32", sT0, sT0, 17))
    p += srd(SRD_K, S(66), S(67), sT0, 131072)
    p += srd(SRD_V, S(68), S(69), sT0, 131072)
    p.append(salu("s_lshl_b32", sT0, sHG, 19)); p.append(salu("s_lshl_b32", sT1, sW, 8))
    p.append(salu("s_add_u32", sT0, sT0, sT1))
    p += srd(SRD_WO, S(72), S(73), sT0, 511 * 1024 + 256)
    p.append(salu("s_mul_i32", sT0, "s2", 114688, scc=False))
    p.append(salu("s_mul_i32", sT1, sW, 28672, scc=False))
    p.append(salu("s_add_u32", sT0, sT0, sT1))
    p += srd(SRD_P, S(84), S(85), sT0, 28672)
    return p

def x_dma(cb, j):
    m = salu("s_add_u32", 'm0', sXB, hexs(cb * XCB + j * XBLK))
    o = smov(sXO, hexs(j * 16384 + cb * 256))
    d = buf_dma(vXD, SRD_X, sXO, 0, ('X', cb))
    return [m, o, d]

def wq_load(ks, r):
    cb, s = divmod(ks, 4)
    so = sOFA if r % 2 == 0 else sOFB
    o = smov(so, hexs((128 * cb + 8 * s + r) * 8192))
    return [o, buf_load(RAW(ks % 4, r), vWQ, SRD_WQ, so)]

def wo_load(ks, r):
    wp, u = divmod(ks, 4)
    g = []
    so = sOFA if r < 4 else sOFB
    if r % 4 == 0:
        g.append(smov(so, hexs((wp * 128 + 32 * u + (16 if r >= 4 else 0)) * 1024)))
    g.append(buf_load(RAW(ks % 4, r), vWO, SRD_WO, so, (r % 4) * 1024))
    return g

def kv_dma(which, slot, n, soff):
    if which == 'K':
        m = salu("s_add_u32", 'm0', sKB, hexs(slot * KREG + n * KG - (n % 4) * 1024))
        d = buf_dma(vD, SRD_K, soff, (n % 4) * 1024, ('K', slot), KVFLAGS)
    else:
        m = salu("s_add_u32", 'm0', sVB, hexs(slot * VREG + n * VG - (n % 4) * 1024))
        d = buf_dma(vD, SRD_V, soff, (n % 4) * 1024, ('V', slot), KVFLAGS)
    return [m, d]

KVFLAGS = ""

def chain(groups, lo, hi):
    out = []
    prev = None
    n = len(groups)
    for k, g in enumerate(groups):
        glo = lo + (hi - lo) * k // n
        for ins in g:
            aft = []
            if prev is not None:
                d = 1 if (ins.kind == 'dma') else 0
                aft.append((prev, d))
            win(ins, glo, hi, aft)
            out.append(ins); prev = ins
    return out

def perms(ks, jt):
    out = []
    sel = sSELLO if jt % 2 == 0 else sSELHI
    for q in range(4):
        out.append(valu("v_perm_b32", AF((8 * ks + jt) % 3)[q], RAW(ks % 4, 2 * q + 1)[jt // 2], RAW(ks % 4, 2 * q)[jt // 2], sel))
    return out

def gemm_phase(kind):
    pre = perms(0, 0)
    mf = []; fl = []
    for ks in range(16):
        base = ks * 56
        for jt in range(8):
            for j in range(7):
                c = 0 if ks == 0 else ACC(jt, j)
                mf.append(mfma(ACC(jt, j), AF((8 * ks + jt) % 3), BF(ks % 2, j), c))
        for jt in range(8):
            n = 8 * ks + jt + 1
            if n >= 128: continue
            for q, pi in enumerate(perms(n // 8, n % 8)):
                fl.append(win(pi, 7 * (n - 1) - 1 if n % 8 else 7 * (n - 1), 7 * n - 2))
        if ks + 3 < 16:
            ld = wq_load if kind == 'Q' else wo_load
            fl += chain([ld(ks + 3, r) for r in range(8)], base + 1, base + 40)
        if ks + 1 < 16:
            rd = []
            k1 = ks + 1
            if kind == 'Q':
                cb, s = divmod(k1, 4)
                bar = None
                if s == 0:
                    bar = win(barrier(tok_wait=[('X', cb)]), base + 2, base + 2)
                    bar.kind = 'bar'
                    fl.append(bar)
                for j in range(7):
                    r = ds_read128(BF(k1 % 2, j), vXRa if cb < 2 else vXRb, (cb % 2) * XCB + j * XBLK + s * 16)
                    win(r, base + 4 + 5 * j, base + 48, [(bar, 0)] if bar else [])
                    fl.append(r)
            else:
                wp, u = divmod(k1, 4)
                for j in range(7):
                    off = (u % 2) * (KREG if u < 2 else VREG) + wp * (KSLOT if u < 2 else VSLOT) + j * 1024
                    r = ds_read128(BF(k1 % 2, j), vL0 if u < 2 else vL1, off)
                    win(r, base + 4 + 5 * j, base + 48)
                    fl.append(r)
        if kind == 'Q':
            cb, s = divmod(ks, 4)
            grp = []
            if cb == 0 and s == 0: grp = [x_dma(2, j) for j in range(7)]
            if cb == 0 and s == 1: grp = kv_init('K', 0)
            if cb == 1 and s == 0: grp = [x_dma(3, j) for j in range(7)]
            if cb == 1 and s == 1: grp = kv_init('K', 1)
            if cb == 2 and s == 0: grp = kv_init('V', 0)
            if cb == 3 and s == 0: grp = kv_init('V', 1)
            if grp: fl += chain(grp, base + 3, base + 54)
    return pre + weave(mf, fl, name="gemm" + kind)

def kv_init(which, step):
    g = []
    for n in range(8):
        x = []
        if n % 4 == 0: x.append(smov(sXO, hexs(step * 8192 + (n // 4) * 4096)))
        x += kv_dma(which, step % 2, n, sXO)
        g.append(x)
    return g

def q_start():
    p = []
    for j in range(7):
        g = x_dma(0, j); p += g
    for r in range(8): p += wq_load(0, r)
    for r in range(8): p += wq_load(1, r)
    for j in range(7):
        g = x_dma(1, j); p += g
    for r in range(8): p += wq_load(2, r)
    p.append(valu("v_mov_b32", TMP(0), "0x3f803f80"))
    for q in range(4): p.append(valu("v_accvgpr_write_b32", ONES[q], TMP(0)))
    p.append(barrier(tok_wait=[('X', 0)]))
    for j in range(7):
        p.append(ds_read128(BF(0, j), vXRa, j * XBLK))
    return p

def q_convert():
    p = []
    for j in range(7):
        for s in range(4):
            t = [TMP(k) for k in range(8)]
            for jt in range(8): p.append(valu("v_accvgpr_read_b32", t[jt], ACC(jt, j)[s]))
            for jt in range(8): p.append(valu("v_mul_f32", t[jt], sSCALE, t[jt]))
            for u in range(4): p.append(valu("v_cvt_pk_bf16_f32", QF(j, s)[u], t[2 * u], t[2 * u + 1]))
    return p

def k_read(slot, kt, s):
    return ds_read128(KF(kt, s), vKR, slot * KREG + kt * XBLK + s * 16, ldsrd=('K', slot), tok_wait=[('K', slot)])

def v_read(slot, t, hh):
    return ds_read_tr(VF(t)[2 * hh:2 * hh + 2], vVR(t // 2), slot * VREG + hh * 4 * VG + (t % 2) * 32, ldsrd=('V', slot), tok_wait=[('V', slot)])

def qk(u):
    j = u % 7
    out = []
    for kt in range(2):
        for s in range(4):
            out.append(mfma(SB(u % 2, kt), KF(kt, s), QF(j, s), NEGM(j) if s == 0 else SB(u % 2, kt)))
    return out

def pv(u):
    j = u % 7
    out = [mfma(ACC(t, j), VF(t), PB(u % 2), ACC(t, j)) for t in range(8)]
    out.append(mfma(LS(j), ONES, PB(u % 2), LS(j)))
    return out

def sm(u):
    ex = []; cv = []
    for kt in range(2):
        for r in range(4):
            x = SB(u % 2, kt)[r]
            ex.append(valu("v_exp_f32", x, x, kind='trans'))
    for q in range(4):
        kt, r = q // 2, 2 * (q % 2)
        cv.append(valu("v_cvt_pk_bf16_f32", PB(u % 2)[q], SB(u % 2, kt)[r], SB(u % 2, kt)[r + 1]))
    return ex, cv

def lane_max(x, t):
    return [valu("v_mov_b32", t, x),
            I(f"v_permlane32_swap_b32 {x}, {t}", 'perml', rd=[x, t], wr=[x, t]),
            valu("v_max_f32", x, x, t),
            valu("v_mov_b32", t, x),
            I(f"v_permlane16_swap_b32 {x}, {t}", 'perml', rd=[x, t], wr=[x, t]),
            valu("v_max_f32", x, x, t)]

def zero_acc():
    p = []
    for k in range(63):
        for q in range(4): p.append(valu("v_accvgpr_write_b32", A(4 * k + q), 0))
    return p

def att_prologue():
    p = []
    for kt in range(2):
        for s in range(4): p.append(k_read(0, kt, s))
    p += zero_acc()
    for j in range(7):
        for s in range(4):
            p.append(mfma(NEGM(j), KF(0, s), QF(j, s), 0 if s == 0 else NEGM(j)))
    for j in range(7):
        n = NEGM(j)
        p.append(valu("v_max3_f32", n[0], n[0], n[1], n[2]))
        p.append(valu("v_max_f32", n[0], n[0], n[3]))
    seqs = [lane_max(NEGM(j)[0], NEGM(j)[1]) for j in range(7)]
    for k in range(6):
        for j in range(7): p.append(seqs[j][k])
    for j in range(7):
        n = NEGM(j)
        for q in (1, 2, 3, 0): p.append(valu("v_sub_f32", n[q], 0, n[0]))
    return p

def att_start():
    p = []
    for t in range(8):
        for hh in range(2): p.append(v_read(0, t, hh))
    p += qk(0) + qk(1)
    ex, cv = sm(0)
    p += ex + cv
    p.append(smov(sKVA, 2 * 8192)); p.append(smov(sKVB, 2 * 8192 + 4096))
    p.append(smov(sCNT, 8))
    return p

def att_body():
    mf = []; fl = []
    for u in range(14):
        mf += qk(u + 2) + pv(u)
    NP = 17
    last = 14 * NP - 1
    for u in range(14):
        b = u * NP
        ex, cv = sm(u + 1)
        for k, e in enumerate(ex):
            kt = k // 4
            lo = max(0, b - NP + (7 if kt == 0 else 11))
            win(e, lo, min(last - 2, b + NP - 3 + (0 if kt == 0 else 3)))
        for q, c in enumerate(cv):
            kt = q // 2
            win(c, max(0, b - 1), min(last, b + NP - 1 + (0 if kt == 0 else 3)), [(ex[2 * q], 1), (ex[2 * q + 1], 1)])
        fl += ex + cv
        if u % 7 == 4:
            slot = (u // 7 + 1) % 2
            for kt in range(2):
                for s in range(4):
                    g = b + 4 * kt + s
                    fl.append(win(k_read(slot, kt, s), g, g + 3))
        if u % 7 == 6:
            slot = (u // 7 + 1) % 2
            for t in range(8):
                for hh in range(2):
                    g = b + 8 + t
                    fl.append(win(v_read(slot, t, hh), g, min(last, g + 2)))
    for e in range(2):
        b = e * 7 * NP
        grp = []
        for n in range(8): grp.append(kv_dma('K', e, n, sKVA if n < 4 else sKVB))
        for n in range(8): grp.append(kv_dma('V', e, n, sKVA if n < 4 else sKVB))
        adv = [salu("s_add_u32", sKVA, sKVA, 8192), salu("s_add_u32", sKVB, sKVB, 8192)]
        grp.append(adv)
        fl += chain(grp, b + 10, b + 4 * NP - 2)
    cnt = win(salu("s_sub_u32", sCNT, sCNT, 1), 5 * NP, 13 * NP)
    fl.append(cnt)
    cmp_ = win(raw(f"s_cmp_lg_u32 {sCNT}, 0", 'salu', rd=[sCNT], wr=['scc']), last, last, [(cnt, 1)])
    fl.append(cmp_)
    body = weave(mf, fl, name="att")
    return [label("L_att")] + body + [raw("s_cbranch_scc1 L_att", 'branch')]

def o_convert():
    p = [waitall()]
    for j in range(7):
        rl = TMP(8)
        p.append(valu("v_accvgpr_read_b32", rl, LS(j)[0]))
        p.append(valu("v_rcp_f32", rl, rl, kind='trans'))
        for u in range(4):
            t = [TMP(k) for k in range(8)]
            o = V(176 + 4 * (u % 2), 4)
            for k in range(8): p.append(valu("v_accvgpr_read_b32", t[k], ACC(2 * u + k // 4, j)[k % 4]))
            for k in range(8): p.append(valu("v_mul_f32", t[k], t[k], rl))
            for q in range(4): p.append(valu("v_cvt_pk_bf16_f32", o[q], t[2 * q], t[2 * q + 1]))
            p.append(ds_write128(vOW0 if u < 2 else vOW1, o, (u % 2) * (KREG if u < 2 else VREG) + j * 1024))
    return p

def o_start_loads():
    p = []
    for ks in range(3):
        for r in range(8): p += wo_load(ks, r)
    return p

def o_start():
    p = [barrier()]
    for j in range(7):
        p.append(ds_read128(BF(0, j), vL0, j * 1024))
    return p

def epilogue():
    p = []
    for j in range(7):
        p.append(smov(sOFA, hexs(j * 4096)))
        for r in range(4):
            t = [V(16 * (r % 2) + k) for k in range(8)]
            o = V(64 + 4 * ((4 * j + r) % 8), 4)
            for jt in range(8): p.append(valu("v_accvgpr_read_b32", t[jt], ACC(jt, j)[r]))
            for q in range(4): p.append(valu("v_cvt_pk_bf16_f32", o[q], t[2 * q], t[2 * q + 1]))
            p.append(buf_store(o, vL0, SRD_P, sOFA, r * 1024))
    return p

STAMPS = False
def stamp(k):
    if not STAMPS: return []
    return [I("s_waitcnt lgkmcnt(0)", 'lg0'), raw("s_memtime s[98:99]", 'smem'), I("s_waitcnt lgkmcnt(0)", 'lg0'), smov(S(86 + k), S(98))]

def stamp_out():
    if not STAMPS: return []
    p = [waitall()] + stamp(9)
    p += [raw("s_memrealtime s[98:99]", 'smem'), I("s_waitcnt lgkmcnt(0)", 'lg0')]
    p.append(salu("s_lshl_b32", sT0, "s2", 2)); p.append(salu("s_add_u32", sT0, sT0, sW)); p.append(salu("s_lshl_b32", sT0, sT0, 6))
    p.append(salu("s_add_u32", sT0, sT0, hex(128 << 20)))
    p += srd(SRD_P, S(84), S(85), sT0, 64)
    for k in range(10): p.append(valu("v_mov_b32", V(k), S(86 + k)))
    for k in range(10, 14): p.append(valu("v_mov_b32", V(k), 0))
    p.append(valu("v_mov_b32", V(14), S(96))); p.append(valu("v_mov_b32", V(15), S(98)))
    p.append(valu("v_lshlrev_b32", V(16), 6, vLANE))
    for k in range(4): p.append(buf_store(V(4 * k, 4), V(16), SRD_P, 0, 16 * k))
    return p

def build_main():
    parts = {}
    prog = []
    pr = prologue()
    prog += pr[:2]
    if STAMPS:
        prog += [raw("s_memrealtime s[96:97]", 'smem')] + stamp(0)
    prog += pr[2:]
    prog += q_start()
    prog += stamp(1)
    gq = gemm_phase('Q'); prog += gq
    prog += stamp(2)
    qc = q_convert(); prog += qc
    prog += stamp(3)
    ap = att_prologue() + att_start(); prog += ap
    prog += stamp(4)
    body = att_body(); prog.append(Loop(body))
    prog += stamp(5)
    ol = o_start_loads()
    oc = o_convert()
    prog += [oc[0]] + ol + oc[1:]
    prog += stamp(6)
    prog += o_start()
    prog += stamp(7)
    go = gemm_phase('O'); prog += go
    prog += stamp(8)
    ep = epilogue(); prog += ep
    prog += stamp_out()
    prog.append(label("L_end"))
    prog.append(raw("s_endpgm", 'branch'))
    insert_waits(prog)
    insert_nops(prog)
    for nm, x in (("gemmQ", gq), ("qconv", qc), ("attpro", ap), ("attbody", body), ("oconv", oc), ("gemmO", go), ("epi", ep)):
        print(f"   est {nm}: {estimate(x)} cycles, {len(x)} instrs")
    return emit(prog)

REDUCE = """
.globl reduce_kernel
.p2align 8
.type reduce_kernel,@function
reduce_kernel:
    s_cmp_ge_u32 s2, 896
    s_cbranch_scc1 L_rend
    s_load_dwordx2 s[4:5], s[0:1], 80
    s_load_dwordx2 s[6:7], s[0:1], 96
    s_mov_b32 s3, 0x24924925
    s_mul_hi_u32 s16, s2, s3
    s_mul_i32 s17, s16, 7
    s_sub_u32 s17, s2, s17              ; j
    s_and_b32 s18, s16, 3               ; w
    s_lshr_b32 s19, s16, 2
    s_mul_i32 s20, s19, 917504          ; rest*8*114688
    s_mul_i32 s21, s18, 28672
    s_add_u32 s20, s20, s21
    s_lshl_b32 s21, s17, 12
    s_add_u32 s20, s20, s21             ; + j*4096
    v_lshlrev_b32 v1, 4, v0             ; (r*64 + lane)*16
    s_waitcnt lgkmcnt(0)
    s_add_u32 s8, s6, s20
    s_addc_u32 s9, s7, 0
    s_mov_b32 s10, 806912               ; 7*114688 + 4096
    s_mov_b32 s11, 0x20000
    s_mov_b32 s12, s4
    s_mov_b32 s13, s5
    s_mov_b32 s14, 3670016
    s_mov_b32 s15, 0x20000
    s_mov_b32 s22, 114688
    s_mov_b32 s23, 229376
    s_mov_b32 s24, 344064
    s_mov_b32 s25, 458752
    s_mov_b32 s26, 573440
    s_mov_b32 s27, 688128
    s_mov_b32 s28, 802816
    buffer_load_dwordx4 v[4:7], v1, s[8:11], 0 offen
    buffer_load_dwordx4 v[8:11], v1, s[8:11], s22 offen
    buffer_load_dwordx4 v[12:15], v1, s[8:11], s23 offen
    buffer_load_dwordx4 v[16:19], v1, s[8:11], s24 offen
    buffer_load_dwordx4 v[20:23], v1, s[8:11], s25 offen
    buffer_load_dwordx4 v[24:27], v1, s[8:11], s26 offen
    buffer_load_dwordx4 v[28:31], v1, s[8:11], s27 offen
    buffer_load_dwordx4 v[32:35], v1, s[8:11], s28 offen
    s_and_b32 s29, s19, 15
    s_mul_i32 s29, s29, 112
    s_lshl_b32 s30, s17, 4
    s_add_u32 s29, s29, s30
    s_lshl_b32 s29, s29, 11             ; *2048 bytes
    s_lshr_b32 s30, s19, 4
    s_lshl_b32 s30, s30, 10
    s_add_u32 s29, s29, s30
    s_lshl_b32 s30, s18, 8
    s_add_u32 s29, s29, s30
    v_and_b32 v2, 15, v0
    v_lshlrev_b32 v2, 11, v2
    v_bfe_u32 v3, v0, 4, 2
    v_lshl_add_u32 v2, v3, 6, v2
    v_lshrrev_b32 v3, 6, v0
    v_lshl_add_u32 v2, v3, 4, v2
    s_mov_b32 s31, 0xffff0000
"""

def build_reduce():
    L = REDUCE.strip("\n").split("\n")
    for p in range(8):
        L.append(f"    s_waitcnt vmcnt({7-p})")
        for d in range(4):
            src = 4 + 4 * p + d
            if p == 0:
                L.append(f"    v_lshlrev_b32 v{36+d}, 16, v{src}")
                L.append(f"    v_and_b32 v{40+d}, s31, v{src}")
            else:
                L.append(f"    v_lshlrev_b32 v44, 16, v{src}")
                L.append(f"    v_and_b32 v45, s31, v{src}")
                L.append(f"    v_add_f32 v{36+d}, v{36+d}, v44")
                L.append(f"    v_add_f32 v{40+d}, v{40+d}, v45")
    for d in range(4):
        L.append(f"    v_cvt_pk_bf16_f32 v{4+d}, v{36+d}, v{40+d}")
    L.append("    buffer_store_dwordx4 v[4:7], v2, s[12:15], s29 offen")
    L.append("L_rend:")
    L.append("    s_endpgm")
    return L

HEADER = open("cdna_kernels/" + NAME + ".s.ref").read().split("; Override launch geometry")[0]

def main(outp):
    L = [HEADER.rstrip("\n")]
    L.append(f"; @launch kernel=attn_kernel grid=(256,1,1) block=(256,1,1) lds={LDS_TOTAL}")
    L.append("; @launch kernel=reduce_kernel grid=(896,1,1) block=(256,1,1) lds=0")
    L.append('.amdgcn_target "amdgcn-amd-amdhsa--gfx950"')
    L.append(".text")
    L.append(".globl attn_kernel\n.p2align 8\n.type attn_kernel,@function\nattn_kernel:")
    L += build_main()
    L += build_reduce()
    L.append('.section .rodata,"a"')
    for nm, vg, acc in (("attn_kernel", 512, 256), ("reduce_kernel", 48, 48)):
        L.append(f""".p2align 6
.amdhsa_kernel {nm}
  .amdhsa_next_free_vgpr {vg}
  .amdhsa_next_free_sgpr 102
  .amdhsa_accum_offset {acc}
  .amdhsa_group_segment_fixed_size 0
  .amdhsa_kernarg_size 104
  .amdhsa_user_sgpr_count 2
  .amdhsa_user_sgpr_kernarg_segment_ptr 1
  .amdhsa_system_sgpr_workgroup_id_x 1
.end_amdhsa_kernel""")
    open(outp, "w").write("\n".join(L) + "\n")

if __name__ == "__main__":
    args = [a for a in sys.argv[1:] if not a.startswith("-")]
    if "-stamps" in sys.argv: STAMPS = True
    for a in sys.argv[1:]:
        if a.startswith("-D"):
            k, v = a[2:].split("=", 1); globals()[k] = eval(v)
    main(args[0] if args else "cdna_kernels/" + NAME + ".s")
```

```python
import sys, struct
from asmlib import *

NAME = "concat_heads__mha_block_cached__gqa_block_cached__near_ridge"

KG = 1040
VG = 1056
KSLOT = 8 * KG
VSLOT = 8 * VG
KREG = 4 * KSLOT
VREG = 4 * VSLOT
VBASE = 2 * KREG
XBLK = 4 * KG
XCB = 7 * XBLK
LDS_TOTAL = 163840
XBASE = LDS_TOTAL - 4 * XCB

SRD_X, SRD_WQ, SRD_K, SRD_V, SRD_WO, SRD_P = S(8, 4), S(12, 4), S(16, 4), S(20, 4), S(24, 4), S(28, 4)
sW, sHG, sB, sBLK, sHALF = S(32), S(33), S(34), S(35), S(36)
sSELLO, sSELHI, sCNT = S(37), S(38), S(39)
sOFA, sOFB = S(40), S(41)
sKVA, sKVB = S(42), S(43)
sVVA, sVVB = S(44), S(45)
sKB, sVB, sXB = S(46), S(47), S(48)
sSCALE = S(49)
sXO = S(50)
sT0, sT1, sT2, sT3 = S(52), S(53), S(54), S(55)
sTHR = S(56)
sATT = S(57)

def RAW(s, r): return V(32 * s + 4 * r, 4)
def AF(k): return V(128 + 4 * k, 4)
def BF(s, j): return V(140 + 28 * s + 4 * j, 4)
def QF(j, s): return V(16 * j + 4 * s, 4)
def KF(kt, s): return V(112 + 16 * kt + 4 * s, 4)
def VF(t): return V(144 + 4 * t, 4)
def SB(b, kt): return V(176 + 8 * b + 4 * kt, 4)
def PB(b): return V(192 + 4 * b, 4)
def NEGM(j): return V(200 + 4 * j, 4)
def TMP(k, n=1): return V(228 + k, n)
vKR = V(240);
def vVR(th): return V(241 + th)
vD = V(245); vXRa = V(246); vXRb = V(247); vXD = V(248); vWQ = V(249); vWO = V(250)
vL0 = V(251); vL1 = V(252); vOW0 = V(253); vOW1 = V(254); vLANE = V(255)
def ACC(t, j): return A(32 * j + 4 * t, 4)
def LS(j): return A(224 + 4 * j, 4)
ONES = A(252, 4)

def f32bits(x): return struct.unpack("<I", struct.pack("<f", x))[0]
SCALE = f32bits(1.4426950408889634 * (128 ** -0.5))

def win(i, lo, hi, after=()):
    i.lo, i.hi = lo, hi; i.after = list(after); return i

def srd(dst, lo, hi, off_s, size):
    return [salu("s_add_u32", dst[0], lo, off_s), salu("s_addc_u32", dst[1], hi, 0, rdscc=True),
            smov(dst[2], hexs(size)), smov(dst[3], "0x20000")]

def prologue():
    p = []
    p.append(raw("s_cmp_ge_u32 s2, 256", 'salu', rd=['s2'], wr=['scc']))
    p.append(raw("s_cbranch_scc1 L_end", 'branch'))
    p.append(raw("s_load_dwordx16 s[64:79], s[0:1], 0", 'smem'))
    p.append(raw("s_load_dwordx4 s[80:83], s[0:1], 64", 'smem'))
    p.append(raw("s_load_dwordx2 s[84:85], s[0:1], 96", 'smem'))
    t = [TMP(k) for k in range(8)]
    p.append(valu("v_lshrrev_b32", t[0], 6, V(0)))
    p.append(valu("v_and_b32", vLANE, 63, V(0)))
    p.append(valu("v_readfirstlane_b32", sW, t[0], kind='rfl'))
    p.append(salu("s_and_b32", sHG, "s2", 7))
    p.append(salu("s_lshr_b32", sT0, "s2", 3))
    p.append(salu("s_and_b32", sHALF, sT0, 1))
    p.append(salu("s_lshr_b32", sB, sT0, 1))
    p.append(salu("s_and_b32", sB, sB, 7))
    p.append(salu("s_lshr_b32", sBLK, sT0, 4))
    p.append(smov(sSELLO, "0x05040100")); p.append(smov(sSELHI, "0x07060302"))
    p.append(smov(sSCALE, hex(SCALE)))
    i_, g_, i4, im = t[1], t[2], t[3], t[4]
    p.append(valu("v_and_b32", i_, 15, vLANE))
    p.append(valu("v_lshrrev_b32", g_, 4, vLANE))
    p.append(valu("v_lshrrev_b32", i4, 2, i_))
    p.append(valu("v_and_b32", im, 3, i_))
    p.append(valu("v_xor_b32", t[5], g_, im))
    p.append(valu("v_lshlrev_b32", t[5], 6, t[5]))
    p.append(valu("v_lshl_add_u32", t[5], im, 8, t[5]))
    p.append(valu("v_mul_u32_u24", t[6], KG, i4))
    p.append(valu("v_add_u32", t[5], t[5], t[6]))
    p.append(salu("s_mul_i32", sKB, sW, KSLOT, scc=False))
    p.append(salu("s_mul_i32", sVB, sW, VSLOT, scc=False))
    p.append(salu("s_add_u32", sVB, sVB, VBASE))
    p.append(salu("s_mul_i32", sXB, sW, KG, scc=False))
    p.append(salu("s_add_u32", sXB, sXB, XBASE))
    p.append(valu("v_add_u32", vKR, sKB, t[5]))
    p.append(valu("v_add_u32", vXRa, XBASE, t[5]))
    p.append(valu("v_add_u32", vXRb, XBASE + 2 * XCB, t[5]))
    p.append(valu("v_mul_u32_u24", t[5], VG, g_))
    p.append(valu("v_lshl_add_u32", t[5], i4, 8, t[5]))
    p.append(valu("v_lshl_add_u32", t[5], im, 3, t[5]))
    p.append(valu("v_add_u32", t[5], sVB, t[5]))
    for th in range(4):
        p.append(valu("v_xor_b32", t[6], th, i4))
        p.append(valu("v_lshl_add_u32", vVR(th), t[6], 6, t[5]))
    p.append(valu("v_lshlrev_b32", t[5], 2, g_))
    p.append(valu("v_xor_b32", t[5], t[5], i_))
    p.append(valu("v_lshlrev_b32", t[5], 4, t[5]))
    p.append(valu("v_lshl_add_u32", vD, g_, 8, t[5]))
    p.append(valu("v_lshl_add_u32", vXD, g_, 10, t[5]))
    p.append(valu("v_lshlrev_b32", t[5], 4, i_))
    p.append(valu("v_lshl_add_u32", vWQ, g_, 18, t[5]))
    p.append(valu("v_lshl_add_u32", vWO, g_, 12, t[5]))
    p.append(valu("v_lshlrev_b32", vL0, 4, vLANE))
    p.append(valu("v_add_u32", vL1, VBASE, vL0))
    p.append(valu("v_add_u32", vOW0, sKB, vL0))
    p.append(valu("v_add_u32", vOW1, sVB, vL0))
    p.append(raw("s_waitcnt lgkmcnt(0)", 'salu'))
    p.append(raw(f"s_cmp_eq_u32 {sBLK}, 0", 'salu', rd=[sBLK], wr=['scc']))
    for k in range(5):
        p.append(raw(f"s_cselect_b64 s[{64+2*k}:{65+2*k}], s[{64+2*k}:{65+2*k}], s[{74+2*k}:{75+2*k}]", 'salu'))
    p.append(salu("s_lshl_b32", sT0, sB, 1)); p.append(salu("s_add_u32", sT0, sT0, sHALF))
    p.append(salu("s_mul_i32", sT0, sT0, 114688, scc=False))
    p.append(salu("s_lshl_b32", sT1, sW, 12))
    p.append(salu("s_add_u32", sT0, sT0, sT1))
    p += srd(SRD_X, S(64), S(65), sT0, 114688 - 3 * 4096)
    p.append(salu("s_lshl_b32", sT2, sHG, 2)); p.append(salu("s_add_u32", sT2, sT2, sW))
    p.append(salu("s_lshl_b32", sT0, sT2, 8))
    p += srd(SRD_WQ, S(70), S(71), sT0, 511 * 8192 + 256)
    p.append(salu("s_lshl_b32", sT0, sB, 5)); p.append(salu("s_add_u32", sT0, sT0, sT2))
    p.append(salu("s_lshl_b32", sT0, sT0, 17))
    p += srd(SRD_K, S(66), S(67), sT0, 131072)
    p += srd(SRD_V, S(68), S(69), sT0, 131072)
    p.append(salu("s_lshl_b32", sT0, sHG, 19)); p.append(salu("s_lshl_b32", sT1, sW, 8))
    p.append(salu("s_add_u32", sT0, sT0, sT1))
    p += srd(SRD_WO, S(72), S(73), sT0, 511 * 1024 + 256)
    p.append(salu("s_mul_i32", sT0, "s2", 114688, scc=False))
    p.append(salu("s_mul_i32", sT1, sW, 28672, scc=False))
    p.append(salu("s_add_u32", sT0, sT0, sT1))
    p += srd(SRD_P, S(84), S(85), sT0, 28672)
    return p

def x_dma(cb, j):
    m = salu("s_add_u32", 'm0', sXB, hexs(cb * XCB + j * XBLK))
    o = smov(sXO, hexs(j * 16384 + cb * 256))
    d = buf_dma(vXD, SRD_X, sXO, 0, ('X', cb))
    return [m, o, d]

def wq_load(ks, r):
    cb, s = divmod(ks, 4)
    so = sOFA if r % 2 == 0 else sOFB
    o = smov(so, hexs((128 * cb + 8 * s + r) * 8192))
    return [o, buf_load(RAW(ks % 4, r), vWQ, SRD_WQ, so)]

def wo_load(ks, r):
    wp, u = divmod(ks, 4)
    g = []
    so = sOFA if r < 4 else sOFB
    if r % 4 == 0:
        g.append(smov(so, hexs((wp * 128 + 32 * u + (16 if r >= 4 else 0)) * 1024)))
    g.append(buf_load(RAW(ks % 4, r), vWO, SRD_WO, so, (r % 4) * 1024))
    return g

def kv_dma(which, slot, n, soff):
    if which == 'K':
        m = salu("s_add_u32", 'm0', sKB, hexs(slot * KREG + n * KG - (n % 4) * 1024))
        d = buf_dma(vD, SRD_K, soff, (n % 4) * 1024, ('K', slot), KVFLAGS)
    else:
        m = salu("s_add_u32", 'm0', sVB, hexs(slot * VREG + n * VG - (n % 4) * 1024))
        d = buf_dma(vD, SRD_V, soff, (n % 4) * 1024, ('V', slot), KVFLAGS)
    return [m, d]

KVFLAGS = ""

def chain(groups, lo, hi):
    out = []
    prev = None
    n = len(groups)
    for k, g in enumerate(groups):
        glo = lo + (hi - lo) * k // n
        for ins in g:
            aft = []
            if prev is not None:
                d = 1 if (ins.kind == 'dma') else 0
                aft.append((prev, d))
            win(ins, glo, hi, aft)
            out.append(ins); prev = ins
    return out

def perms(ks, jt):
    out = []
    sel = sSELLO if jt % 2 == 0 else sSELHI
    for q in range(4):
        out.append(valu("v_perm_b32", AF((8 * ks + jt) % 3)[q], RAW(ks % 4, 2 * q + 1)[jt // 2], RAW(ks % 4, 2 * q)[jt // 2], sel))
    return out

def gemm_phase(kind):
    pre = perms(0, 0)
    mf = []; fl = []
    for ks in range(16):
        base = ks * 56
        for jt in range(8):
            for j in range(7):
                c = 0 if ks == 0 else ACC(jt, j)
                mf.append(mfma(ACC(jt, j), AF((8 * ks + jt) % 3), BF(ks % 2, j), c))
        for jt in range(8):
            n = 8 * ks + jt + 1
            if n >= 128: continue
            for q, pi in enumerate(perms(n // 8, n % 8)):
                fl.append(win(pi, 7 * (n - 1) - 1 if n % 8 else 7 * (n - 1), 7 * n - 2))
        if ks + 3 < 16:
            ld = wq_load if kind == 'Q' else wo_load
            fl += chain([ld(ks + 3, r) for r in range(8)], base + 1, base + 40)
        if ks + 1 < 16:
            rd = []
            k1 = ks + 1
            if kind == 'Q':
                cb, s = divmod(k1, 4)
                bar = None
                if s == 0:
                    bar = win(barrier(tok_wait=[('X', cb)]), base + 2, base + 2)
                    bar.kind = 'bar'
                    fl.append(bar)
                for j in range(7):
                    r = ds_read128(BF(k1 % 2, j), vXRa if cb < 2 else vXRb, (cb % 2) * XCB + j * XBLK + s * 16)
                    win(r, base + 4 + 5 * j, base + 48, [(bar, 0)] if bar else [])
                    fl.append(r)
            else:
                wp, u = divmod(k1, 4)
                for j in range(7):
                    off = (u % 2) * (KREG if u < 2 else VREG) + wp * (KSLOT if u < 2 else VSLOT) + j * 1024
                    r = ds_read128(BF(k1 % 2, j), vL0 if u < 2 else vL1, off)
                    win(r, base + 4 + 5 * j, base + 48)
                    fl.append(r)
        if kind == 'Q':
            cb, s = divmod(ks, 4)
            grp = []
            if cb == 0 and s == 0: grp = [x_dma(2, j) for j in range(7)]
            if cb == 0 and s == 1: grp = kv_init('K', 0)
            if cb == 1 and s == 0: grp = [x_dma(3, j) for j in range(7)]
            if cb == 1 and s == 1: grp = kv_init('K', 1)
            if cb == 2 and s == 0: grp = kv_init('V', 0)
            if cb == 3 and s == 0: grp = kv_init('V', 1)
            if grp: fl += chain(grp, base + 3, base + 54)
    return pre + weave(mf, fl, name="gemm" + kind)

def kv_init(which, step):
    g = []
    for n in range(8):
        x = []
        if n % 4 == 0: x.append(smov(sXO, hexs(step * 8192 + (n // 4) * 4096)))
        x += kv_dma(which, step % 2, n, sXO)
        g.append(x)
    return g

def q_start():
    p = []
    for j in range(7):
        g = x_dma(0, j); p += g
    for r in range(8): p += wq_load(0, r)
    for r in range(8): p += wq_load(1, r)
    for j in range(7):
        g = x_dma(1, j); p += g
    for r in range(8): p += wq_load(2, r)
    p.append(valu("v_mov_b32", TMP(0), "0x3f803f80"))
    for q in range(4): p.append(valu("v_accvgpr_write_b32", ONES[q], TMP(0)))
    p.append(barrier(tok_wait=[('X', 0)]))
    for j in range(7):
        p.append(ds_read128(BF(0, j), vXRa, j * XBLK))
    return p

def q_convert():
    p = []
    for j in range(7):
        for s in range(4):
            t = [TMP(k) for k in range(8)]
            for jt in range(8): p.append(valu("v_accvgpr_read_b32", t[jt], ACC(jt, j)[s]))
            for jt in range(8): p.append(valu("v_mul_f32", t[jt], sSCALE, t[jt]))
            for u in range(4): p.append(valu("v_cvt_pk_bf16_f32", QF(j, s)[u], t[2 * u], t[2 * u + 1]))
    return p

def k_read(slot, kt, s):
    return ds_read128(KF(kt, s), vKR, slot * KREG + kt * XBLK + s * 16, ldsrd=('K', slot), tok_wait=[('K', slot)])

def v_read(slot, t, hh):
    return ds_read_tr(VF(t)[2 * hh:2 * hh + 2], vVR(t // 2), slot * VREG + hh * 4 * VG + (t % 2) * 32, ldsrd=('V', slot), tok_wait=[('V', slot)])

def qk(u):
    j = u % 7
    out = []
    for kt in range(2):
        for s in range(4):
            out.append(mfma(SB(u % 2, kt), KF(kt, s), QF(j, s), NEGM(j) if s == 0 else SB(u % 2, kt)))
    return out

def pv(u):
    j = u % 7
    out = [mfma(ACC(t, j), VF(t), PB(u % 2), ACC(t, j)) for t in range(8)]
    out.append(mfma(LS(j), ONES, PB(u % 2), LS(j)))
    return out

def sm(u):
    ex = []; cv = []
    for kt in range(2):
        for r in range(4):
            x = SB(u % 2, kt)[r]
            ex.append(valu("v_exp_f32", x, x, kind='trans'))
    for q in range(4):
        kt, r = q // 2, 2 * (q % 2)
        cv.append(valu("v_cvt_pk_bf16_f32", PB(u % 2)[q], SB(u % 2, kt)[r], SB(u % 2, kt)[r + 1]))
    return ex, cv

def lane_max(x, t):
    return [valu("v_mov_b32", t, x),
            I(f"v_permlane32_swap_b32 {x}, {t}", 'perml', rd=[x, t], wr=[x, t]),
            valu("v_max_f32", x, x, t),
            valu("v_mov_b32", t, x),
            I(f"v_permlane16_swap_b32 {x}, {t}", 'perml', rd=[x, t], wr=[x, t]),
            valu("v_max_f32", x, x, t)]

def zero_acc():
    p = []
    for k in range(63):
        for q in range(4): p.append(valu("v_accvgpr_write_b32", A(4 * k + q), 0))
    return p

def att_prologue():
    p = []
    for kt in range(2):
        for s in range(4): p.append(k_read(0, kt, s))
    p += zero_acc()
    for j in range(7):
        for s in range(4):
            p.append(mfma(NEGM(j), KF(0, s), QF(j, s), 0 if s == 0 else NEGM(j)))
    for j in range(7):
        n = NEGM(j)
        p.append(valu("v_max3_f32", n[0], n[0], n[1], n[2]))
        p.append(valu("v_max_f32", n[0], n[0], n[3]))
    seqs = [lane_max(NEGM(j)[0], NEGM(j)[1]) for j in range(7)]
    for k in range(6):
        for j in range(7): p.append(seqs[j][k])
    for j in range(7):
        n = NEGM(j)
        for q in (1, 2, 3, 0): p.append(valu("v_sub_f32", n[q], 0, n[0]))
    return p

def att_start():
    p = []
    for t in range(8):
        for hh in range(2): p.append(v_read(0, t, hh))
    p += qk(0) + qk(1)
    ex, cv = sm(0)
    p += ex + cv
    p.append(smov(sKVA, 2 * 8192)); p.append(smov(sKVB, 2 * 8192 + 4096))
    p.append(smov(sCNT, 8))
    return p

def att_body():
    mf = []; fl = []
    for u in range(14):
        mf += qk(u + 2) + pv(u)
    NP = 17
    last = 14 * NP - 1
    for u in range(14):
        b = u * NP
        ex, cv = sm(u + 1)
        for k, e in enumerate(ex):
            kt = k // 4
            lo = max(0, b - NP + (7 if kt == 0 else 11))
            win(e, lo, min(last - 2, b + NP - 3 + (0 if kt == 0 else 3)))
        for q, c in enumerate(cv):
            kt = q // 2
            win(c, max(0, b - 1), min(last, b + NP - 1 + (0 if kt == 0 else 3)), [(ex[2 * q], 1), (ex[2 * q + 1], 1)])
        fl += ex + cv
        if u % 7 == 4:
            slot = (u // 7 + 1) % 2
            for kt in range(2):
                for s in range(4):
                    g = b + 4 * kt + s
                    fl.append(win(k_read(slot, kt, s), g, g + 3))
        if u % 7 == 6:
            slot = (u // 7 + 1) % 2
            for t in range(8):
                for hh in range(2):
                    g = b + 8 + t
                    fl.append(win(v_read(slot, t, hh), g, min(last, g + 2)))
    for e in range(2):
        b = e * 7 * NP
        grp = []
        for n in range(8): grp.append(kv_dma('K', e, n, sKVA if n < 4 else sKVB))
        for n in range(8): grp.append(kv_dma('V', e, n, sKVA if n < 4 else sKVB))
        adv = [salu("s_add_u32", sKVA, sKVA, 8192), salu("s_add_u32", sKVB, sKVB, 8192)]
        grp.append(adv)
        fl += chain(grp, b + 10, b + 4 * NP - 2)
    cnt = win(salu("s_sub_u32", sCNT, sCNT, 1), 5 * NP, 13 * NP)
    fl.append(cnt)
    cmp_ = win(raw(f"s_cmp_lg_u32 {sCNT}, 0", 'salu', rd=[sCNT], wr=['scc']), last, last, [(cnt, 1)])
    fl.append(cmp_)
    body = weave(mf, fl, name="att")
    return [label("L_att")] + body + [raw("s_cbranch_scc1 L_att", 'branch')]

def o_convert():
    p = [waitall()]
    for j in range(7):
        rl = TMP(8)
        p.append(valu("v_accvgpr_read_b32", rl, LS(j)[0]))
        p.append(valu("v_rcp_f32", rl, rl, kind='trans'))
        for u in range(4):
            t = [TMP(k) for k in range(8)]
            o = V(176 + 4 * (u % 2), 4)
            for k in range(8): p.append(valu("v_accvgpr_read_b32", t[k], ACC(2 * u + k // 4, j)[k % 4]))
            for k in range(8): p.append(valu("v_mul_f32", t[k], t[k], rl))
            for q in range(4): p.append(valu("v_cvt_pk_bf16_f32", o[q], t[2 * q], t[2 * q + 1]))
            p.append(ds_write128(vOW0 if u < 2 else vOW1, o, (u % 2) * (KREG if u < 2 else VREG) + j * 1024))
    return p

def o_start_loads():
    p = []
    for ks in range(3):
        for r in range(8): p += wo_load(ks, r)
    return p

def o_start():
    p = [barrier()]
    for j in range(7):
        p.append(ds_read128(BF(0, j), vL0, j * 1024))
    return p

def epilogue():
    p = []
    for j in range(7):
        p.append(smov(sOFA, hexs(j * 4096)))
        for r in range(4):
            t = [V(16 * (r % 2) + k) for k in range(8)]
            o = V(64 + 4 * ((4 * j + r) % 8), 4)
            for jt in range(8): p.append(valu("v_accvgpr_read_b32", t[jt], ACC(jt, j)[r]))
            for q in range(4): p.append(valu("v_cvt_pk_bf16_f32", o[q], t[2 * q], t[2 * q + 1]))
            p.append(buf_store(o, vL0, SRD_P, sOFA, r * 1024))
    return p

STAMPS = False
def stamp(k):
    if not STAMPS: return []
    return [I("s_waitcnt lgkmcnt(0)", 'lg0'), raw("s_memtime s[98:99]", 'smem'), I("s_waitcnt lgkmcnt(0)", 'lg0'), smov(S(86 + k), S(98))]

def stamp_out():
    if not STAMPS: return []
    p = [waitall()] + stamp(9)
    p += [raw("s_memrealtime s[98:99]", 'smem'), I("s_waitcnt lgkmcnt(0)", 'lg0')]
    p.append(salu("s_lshl_b32", sT0, "s2", 2)); p.append(salu("s_add_u32", sT0, sT0, sW)); p.append(salu("s_lshl_b32", sT0, sT0, 6))
    p.append(salu("s_add_u32", sT0, sT0, hex(128 << 20)))
    p += srd(SRD_P, S(84), S(85), sT0, 64)
    for k in range(10): p.append(valu("v_mov_b32", V(k), S(86 + k)))
    for k in range(10, 14): p.append(valu("v_mov_b32", V(k), 0))
    p.append(valu("v_mov_b32", V(14), S(96))); p.append(valu("v_mov_b32", V(15), S(98)))
    p.append(valu("v_lshlrev_b32", V(16), 6, vLANE))
    for k in range(4): p.append(buf_store(V(4 * k, 4), V(16), SRD_P, 0, 16 * k))
    return p

DBGT = False
def dbg_out():
    if not DBGT: return []
    p = [waitall(), raw("s_memrealtime s[98:99]", 'smem'), raw("s_load_dwordx2 s[100:101], s[0:1], 88", 'smem'), I("s_waitcnt lgkmcnt(0)", 'lg0')]
    p.append(smov(SRD_P[0], S(100))); p.append(smov(SRD_P[1], S(101))); p.append(smov(SRD_P[2], 64)); p.append(smov(SRD_P[3], "0x20000"))
    p.append(salu("s_not_b32", sT0, S(96)))
    p.append(valu("v_mov_b32", V(0), S(98))); p.append(valu("v_mov_b32", V(1), sT0))
    p.append(valu("v_lshlrev_b32", V(16), 6, vLANE))
    p.append(I(f"buffer_atomic_umax v0, v16, {SRD_P}, 0 offen", 'vst', rd=[V(0), V(16), SRD_P]))
    p.append(I(f"buffer_atomic_umax v1, v16, {SRD_P}, 0 offen offset:4", 'vst', rd=[V(1), V(16), SRD_P]))
    for k in range(1, 10):
        p.append(salu("s_sub_u32", sT0, S(86 + k), S(86)))
        p.append(valu("v_mov_b32", V(2 + k), sT0))
        p.append(I(f"buffer_atomic_umax v{2+k}, v16, {SRD_P}, 0 offen offset:{8+4*k}", 'vst', rd=[V(2 + k), V(16), SRD_P]))
    return p

def build_main():
    parts = {}
    prog = []
    pr = prologue()
    prog += pr[:2]
    if STAMPS:
        prog += [raw("s_memrealtime s[96:97]", 'smem')] + stamp(0)
    prog += pr[2:]
    prog += q_start()
    prog += stamp(1)
    gq = gemm_phase('Q'); prog += gq
    prog += stamp(2)
    qc = q_convert(); prog += qc
    prog += stamp(3)
    ap = att_prologue() + att_start(); prog += ap
    prog += stamp(4)
    body = att_body(); prog.append(Loop(body))
    prog += stamp(5)
    ol = o_start_loads()
    oc = o_convert()
    prog += [oc[0]] + ol + oc[1:]
    prog += stamp(6)
    prog += o_start()
    prog += stamp(7)
    go = gemm_phase('O'); prog += go
    prog += stamp(8)
    ep = epilogue(); prog += ep
    prog += stamp_out()
    prog += dbg_out()
    prog.append(label("L_end"))
    prog.append(raw("s_endpgm", 'branch'))
    insert_waits(prog)
    insert_nops(prog)
    for nm, x in (("gemmQ", gq), ("qconv", qc), ("attpro", ap), ("attbody", body), ("oconv", oc), ("gemmO", go), ("epi", ep)):
        print(f"   est {nm}: {estimate(x)} cycles, {len(x)} instrs")
    return emit(prog)

REDUCE = """
.globl reduce_kernel
.p2align 8
.type reduce_kernel,@function
reduce_kernel:
    s_cmp_ge_u32 s2, 896
    s_cbranch_scc1 L_rend
    s_load_dwordx2 s[4:5], s[0:1], 80
    s_load_dwordx2 s[6:7], s[0:1], 96
    s_mov_b32 s3, 0x24924925
    s_mul_hi_u32 s16, s2, s3
    s_mul_i32 s17, s16, 7
    s_sub_u32 s17, s2, s17              ; j
    s_and_b32 s18, s16, 3               ; w
    s_lshr_b32 s19, s16, 2
    s_mul_i32 s20, s19, 917504          ; rest*8*114688
    s_mul_i32 s21, s18, 28672
    s_add_u32 s20, s20, s21
    s_lshl_b32 s21, s17, 12
    s_add_u32 s20, s20, s21             ; + j*4096
    v_lshlrev_b32 v1, 4, v0             ; (r*64 + lane)*16
    s_waitcnt lgkmcnt(0)
    s_add_u32 s8, s6, s20
    s_addc_u32 s9, s7, 0
    s_mov_b32 s10, 806912               ; 7*114688 + 4096
    s_mov_b32 s11, 0x20000
    s_mov_b32 s12, s4
    s_mov_b32 s13, s5
    s_mov_b32 s14, 3670016
    s_mov_b32 s15, 0x20000
    s_mov_b32 s22, 114688
    s_mov_b32 s23, 229376
    s_mov_b32 s24, 344064
    s_mov_b32 s25, 458752
    s_mov_b32 s26, 573440
    s_mov_b32 s27, 688128
    s_mov_b32 s28, 802816
    buffer_load_dwordx4 v[4:7], v1, s[8:11], 0 offen
    buffer_load_dwordx4 v[8:11], v1, s[8:11], s22 offen
    buffer_load_dwordx4 v[12:15], v1, s[8:11], s23 offen
    buffer_load_dwordx4 v[16:19], v1, s[8:11], s24 offen
    buffer_load_dwordx4 v[20:23], v1, s[8:11], s25 offen
    buffer_load_dwordx4 v[24:27], v1, s[8:11], s26 offen
    buffer_load_dwordx4 v[28:31], v1, s[8:11], s27 offen
    buffer_load_dwordx4 v[32:35], v1, s[8:11], s28 offen
    s_and_b32 s29, s19, 15
    s_mul_i32 s29, s29, 112
    s_lshl_b32 s30, s17, 4
    s_add_u32 s29, s29, s30
    s_lshl_b32 s29, s29, 11             ; *2048 bytes
    s_lshr_b32 s30, s19, 4
    s_lshl_b32 s30, s30, 10
    s_add_u32 s29, s29, s30
    s_lshl_b32 s30, s18, 8
    s_add_u32 s29, s29, s30
    v_and_b32 v2, 15, v0
    v_lshlrev_b32 v2, 11, v2
    v_bfe_u32 v3, v0, 4, 2
    v_lshl_add_u32 v2, v3, 6, v2
    v_lshrrev_b32 v3, 6, v0
    v_lshl_add_u32 v2, v3, 4, v2
    s_mov_b32 s31, 0xffff0000
"""

def build_reduce():
    L = REDUCE.strip("\n").split("\n")
    if STAMPS:
        k = L.index("reduce_kernel:")
        L.insert(k + 1, "    s_memrealtime s[40:41]")
    for p in range(8):
        L.append(f"    s_waitcnt vmcnt({7-p})")
        for d in range(4):
            src = 4 + 4 * p + d
            if p == 0:
                L.append(f"    v_lshlrev_b32 v{36+d}, 16, v{src}")
                L.append(f"    v_and_b32 v{40+d}, s31, v{src}")
            else:
                L.append(f"    v_lshlrev_b32 v44, 16, v{src}")
                L.append(f"    v_and_b32 v45, s31, v{src}")
                L.append(f"    v_add_f32 v{36+d}, v{36+d}, v44")
                L.append(f"    v_add_f32 v{40+d}, v{40+d}, v45")
    for d in range(4):
        L.append(f"    v_cvt_pk_bf16_f32 v{4+d}, v{36+d}, v{40+d}")
    L.append("    buffer_store_dwordx4 v[4:7], v2, s[12:15], s29 offen")
    if STAMPS:
        L.append("""    s_cmp_lg_u32 s2, 0
    s_cbranch_scc1 L_rend
    s_waitcnt vmcnt(0)
    s_memrealtime s[42:43]
    s_load_dwordx2 s[44:45], s[0:1], 88
    s_waitcnt lgkmcnt(0)
    s_add_u32 s8, s6, 0x8000000
    s_addc_u32 s9, s7, 0
    s_mov_b32 s10, 64
    s_mov_b32 s11, 0x20000
    s_mov_b32 s12, s44
    s_mov_b32 s13, s45
    s_mov_b32 s14, 64
    s_mov_b32 s15, 0x20000
    v_lshlrev_b32 v1, 2, v0
    buffer_load_dword v4, v1, s[8:11], 0 offen
    v_mov_b32 v5, s40
    v_mov_b32 v6, s42
    s_waitcnt vmcnt(0)
    v_cmp_eq_u32 vcc, 12, v0
    s_nop 1
    v_cndmask_b32 v4, v4, v5, vcc
    v_cmp_eq_u32 vcc, 13, v0
    s_nop 1
    v_cndmask_b32 v4, v4, v6, vcc
    buffer_store_dword v4, v1, s[12:15], 0 offen""")
    L.append("L_rend:")
    L.append("    s_endpgm")
    return L

HEADER = open("cdna_kernels/" + NAME + ".s.ref").read().split("; Override launch geometry")[0]

def main(outp):
    L = [HEADER.rstrip("\n")]
    L.append(f"; @launch kernel=attn_kernel grid=(256,1,1) block=(256,1,1) lds={LDS_TOTAL}")
    L.append("; @launch kernel=reduce_kernel grid=(896,1,1) block=(256,1,1) lds=0")
    L.append('.amdgcn_target "amdgcn-amd-amdhsa--gfx950"')
    L.append(".text")
    L.append(".globl attn_kernel\n.p2align 8\n.type attn_kernel,@function\nattn_kernel:")
    L += build_main()
    L += build_reduce()
    L.append('.section .rodata,"a"')
    for nm, vg, acc in (("attn_kernel", 512, 256), ("reduce_kernel", 48, 48)):
        L.append(f""".p2align 6
.amdhsa_kernel {nm}
  .amdhsa_next_free_vgpr {vg}
  .amdhsa_next_free_sgpr 102
  .amdhsa_accum_offset {acc}
  .amdhsa_group_segment_fixed_size 0
  .amdhsa_kernarg_size 104
  .amdhsa_user_sgpr_count 2
  .amdhsa_user_sgpr_kernarg_segment_ptr 1
  .amdhsa_system_sgpr_workgroup_id_x 1
.end_amdhsa_kernel""")
    open(outp, "w").write("\n".join(L) + "\n")

if __name__ == "__main__":
    args = [a for a in sys.argv[1:] if not a.startswith("-")]
    if "-stamps" in sys.argv: STAMPS = True
    for a in sys.argv[1:]:
        if a.startswith("-D"):
            k, v = a[2:].split("=", 1); globals()[k] = eval(v)
    main(args[0] if args else "cdna_kernels/" + NAME + ".s")
```
